```python
import torch

def _softmax(x, axis=-1):
    return torch.softmax(x, dim=axis)
def _gelu(x):
    return torch.nn.functional.gelu(x, approximate="tanh")
def _silu(x):
    return torch.nn.functional.silu(x)
def _sigmoid(x):
    return torch.sigmoid(x)
def _layernorm(x, axis=-1, eps=1e-5):
    m = x.mean(dim=axis, keepdim=True)
    v = x.var(dim=axis, keepdim=True, unbiased=False)
    return (x - m) / torch.sqrt(v + eps)
def _scatter_add(tgt, idx, src, axis=0):
    return tgt.clone().index_add_(axis, idx, src)
def _segment_sum(src, seg, n):
    out = torch.zeros((n,) + src.shape[1:], dtype=src.dtype)
    return out.index_add_(0, seg, src)
def _pad(x, pw):
    flat = tuple(v for pair in reversed(pw) for v in pair)
    return torch.nn.functional.pad(x, flat)

kernel_name = 'parallel_sum__ssm_conv_s4__glu_gated_swiglu__prompt'

def setup_inputs():

    _w = (lambda a: (lambda t: t.to(torch.bfloat16) if t.is_floating_point() else t)(torch.as_tensor(a)))
    def _A_setup():
        B, L, D, N = 1, 2048, 640, 192
        A_re = -(lambda _x: torch.exp(torch.as_tensor(_x)))((lambda *s: torch.randn(*s, dtype=torch.bfloat16) * 6.4)(D, N))
        A_im = torch.pi * (lambda *s: torch.randn(*s, dtype=torch.bfloat16) * 0.05)(D, N)
        B_re = (lambda *s: torch.randn(*s, dtype=torch.bfloat16) * 0.1)(D, N)
        B_im = (lambda *s: torch.randn(*s, dtype=torch.bfloat16) * 0.1)(D, N)
        C_re = (lambda *s: torch.randn(*s, dtype=torch.bfloat16) * 0.1)(D, N)
        C_im = (lambda *s: torch.randn(*s, dtype=torch.bfloat16) * 0.1)(D, N)
        log_dt = (lambda *s: torch.randn(*s, dtype=torch.bfloat16) * 0.05)(D) * 0.5 - 4.0
        Dskip = (lambda *s: torch.randn(*s, dtype=torch.bfloat16) * 0.05)(D)
        return {
            "u": _w((lambda *s: torch.randn(*s, dtype=torch.bfloat16) * 0.05)(B, L, D)),
            "A_re": _w(A_re),
            "A_im": _w(A_im),
            "B_re": _w(B_re),
            "B_im": _w(B_im),
            "C_re": _w(C_re),
            "C_im": _w(C_im),
            "log_dt": _w(log_dt),
            "Dskip": _w(Dskip),
        }
    _A_in = _A_setup()

    def _B_setup():
        B, S, D, F = 1, 2048, 640, 1536
        return {
            "x": _w((lambda *s: torch.randn(*s, dtype=torch.bfloat16) * 0.05)(B, S, D)),
            "w1": _w((lambda *s: torch.randn(*s, dtype=torch.bfloat16) * 0.4)(D, F) * (2.0 / D) ** 0.5),
            "w3": _w((lambda *s: torch.randn(*s, dtype=torch.bfloat16) * 0.4)(D, F) * (2.0 / D) ** 0.5),
            "w2": _w((lambda *s: torch.randn(*s, dtype=torch.bfloat16) * 0.4)(F, D) * (2.0 / F) ** 0.5),
        }
    _B_in = _B_setup()

    return {
        "A_u": _A_in["u"],
        "A_A_re": _A_in["A_re"],
        "A_A_im": _A_in["A_im"],
        "A_B_re": _A_in["B_re"],
        "A_B_im": _A_in["B_im"],
        "A_C_re": _A_in["C_re"],
        "A_C_im": _A_in["C_im"],
        "A_log_dt": _A_in["log_dt"],
        "A_Dskip": _A_in["Dskip"],
        "B_x": _B_in["x"],
        "B_w1": _B_in["w1"],
        "B_w3": _B_in["w3"],
        "B_w2": _B_in["w2"],
    }

def reference(A_u, A_A_re, A_A_im, A_B_re, A_B_im, A_C_re, A_C_im, A_log_dt, A_Dskip, B_x, B_w1, B_w3, B_w2):
    def _A_ref(u, A_re, A_im, B_re, B_im, C_re, C_im, log_dt, Dskip):
        Bsz, L, D = u.shape
        dt = torch.exp(log_dt)[:, None]
        A = A_re + 1j * A_im
        Bc = B_re + 1j * B_im
        Cc = C_re + 1j * C_im
        logdA = dt * A
        dB = dt * Bc
        l = (lambda x, dt: x.to(dt))(torch.arange(L), A_re.dtype)
        P = torch.exp(logdA[:, :, None] * l[None, None, :])
        K = torch.einsum("dn,dnl,dn->dl", Cc, P, dB).real
        L2 = 2 * L
        Kp = _pad(K, ((0, 0), (0, L)))
        up = (lambda x, *d: x.permute(*d))(u, 0, 2, 1)
        up = _pad(up, ((0, 0), (0, 0), (0, L)))
        Kf = (lambda x, axes=(-2,-1): torch.fft.rfft2(x.float(), dim=axes))(Kp[:, None, :], axes=(-2, -1))
        Uf = (lambda x, axes=(-2,-1): torch.fft.rfft2(x.float(), dim=axes))(up[:, :, None, :], axes=(-2, -1))
        Yf = Uf * Kf[None, :, :, :]
        y = (lambda x, s, axes=(-2,-1): torch.fft.irfft2(x, s=s, dim=axes).to(torch.bfloat16))(Yf, (1, L2), axes=(-2, -1))[:, :, 0, :L]
        y = (lambda x, *d: x.permute(*d))(y, 0, 2, 1) + u * Dskip[None, None, :]
        return y

    def _B_ref(x, w1, w3, w2):
        gate = torch.einsum("bsd,df->bsf", x, w1)
        up = torch.einsum("bsd,df->bsf", x, w3)
        h = _silu(gate) * up
        out = torch.einsum("bsf,fd->bsd", h, w2)
        return out

    x = A_u
    xn = _layernorm(x, axis=-1)
    return x + _A_ref(xn, A_A_re, A_A_im, A_B_re, A_B_im, A_C_re, A_C_im, A_log_dt, A_Dskip) + _B_ref(xn, B_w1, B_w3, B_w2)
```

```python
import re

TRANS = ("v_exp_f32","v_log_f32","v_rcp_f32","v_rsq_f32","v_sqrt_f32","v_sin_f32","v_cos_f32","v_rcp_iflag_f32")
REG_RE = re.compile(r'(?<![\w.])(-?\|?)([vsa])(?:(\d+)|\[(\d+):(\d+)\])')

def regs_of(tok):
    out=set()
    tok=tok.strip()
    for m in re.finditer(r'(?<![\w.])([vsa])(?:(\d+)(?![\w])|\[(\d+):(\d+)\])', tok):
        f=m.group(1)
        if m.group(2) is not None: out.add((f,int(m.group(2))))
        else:
            for i in range(int(m.group(3)), int(m.group(4))+1): out.add((f,i))
    if re.search(r'\bvcc\b', tok): out.add(('s','vcc'))
    if re.search(r'\bexec\b', tok): out.add(('s','exec'))
    if re.search(r'\bm0\b', tok): out.add(('s','m0'))
    return out

class Ins:
    __slots__=("text","op","cls","dst","src","passes","dpp","nstates","srcC","wide_data","is_label","is_branch")
    def __init__(self, text):
        self.text=text
        t=text.split(';')[0].strip()
        self.is_label = t.endswith(':')
        self.dst=set(); self.src=set(); self.passes=0; self.dpp=False; self.nstates=1; self.srcC=set(); self.wide_data=set()
        self.is_branch=False
        if self.is_label or not t or t.startswith('.'):
            self.op=""; self.cls="none"; self.nstates=0; return
        parts=t.split(None,1); op=parts[0]; self.op=op
        rest=parts[1] if len(parts)>1 else ""
        ops=[o.strip() for o in rest.split(',')] if rest else []
        def R(i): return regs_of(ops[i].split(' ')[0] if i<len(ops) else "") if i<len(ops) else set()
        def allsrc(a=0):
            s=set()
            for i in range(a,len(ops)): s|=regs_of(ops[i])
            return s
        if op=="s_nop":
            self.cls="nop"; self.nstates=int(ops[0],0)+1; return
        if op.startswith("v_mfma"):
            self.cls="mfma"; self.dst=R(0); self.src=R(1)|R(2)|R(3); self.srcC=R(3)
            self.passes = 8 if ("32x32x16" in op or "32x32x8" in op) else 4
            if "32x32x16" not in op and "16x16x32" not in op: raise ValueError("unknown mfma "+op)
            return
        if op.startswith("v_"):
            self.cls="trans" if any(op.startswith(x) for x in TRANS) else "valu"
            self.dpp = ("row_" in rest or "quad_perm" in rest or "wave_" in rest)
            if op.startswith("v_cmp"):
                self.dst=R(0); self.src=allsrc(1)
                if op.startswith("v_cmpx"): self.dst|={('s','exec')}
            elif op.startswith("v_readfirstlane") or op.startswith("v_readlane"):
                self.dst=R(0); self.src=allsrc(1)
            elif op.startswith("v_permlane") and "swap" in op:
                self.dst=R(0)|R(1); self.src=R(0)|R(1)
            elif op.startswith(("v_add_co","v_sub_co","v_addc_co","v_subb_co","v_subrev_co","v_mad_u64_u32","v_div_scale")):
                self.dst=R(0)|R(1); self.src=allsrc(2)
            else:
                self.dst=R(0); self.src=allsrc(1)
                if op.startswith(("v_fmac","v_dot2c","v_writelane","v_mac","v_pk_fmac")) or self.dpp or "d16" in op: self.src|=R(0)
                if op.startswith("v_cndmask") and len(ops)==3: self.src|={('s','vcc')}
                if op.startswith("v_cndmask") and len(ops)==4: pass
            return
        if op.startswith("ds_"):
            self.cls="ds"
            if op.startswith(("ds_read","ds_bpermute","ds_permute","ds_swizzle")):
                self.dst=R(0); self.src=allsrc(1)
            else: self.src=allsrc(0)
            return
        if op.startswith(("buffer_","global_")):
            self.cls="vmem"
            islds = bool(re.search(r'\blds\b', rest)) or "load_lds" in op
            if op.startswith(("buffer_wbl2","buffer_inv")): return
            if "load" in op and not islds:
                self.dst=R(0); self.src=allsrc(1)
                if "d16" in op: self.src|=R(0)
            elif "atomic" in op:
                self.src=allsrc(0)
                if re.search(r'\bsc0\b', rest): self.dst=R(0)
            else:
                self.src=allsrc(0)
                if islds: self.src|={('s','m0')}; self.cls="vmem_lds"
                if "store" in op and ("x4" in op or "x3" in op):
                    self.wide_data = R(0) if op.startswith("buffer_") else R(1)
            return
        if op.startswith("s_"):
            self.cls="salu"
            if op.startswith(("s_cbranch","s_branch")): self.is_branch=True; return
            if op.startswith(("s_waitcnt","s_barrier","s_endpgm","s_setprio","s_sleep","s_sethalt")): return
            if op.startswith(("s_load","s_buffer_load","s_memtime","s_memrealtime")):
                self.cls="smem"; self.dst=R(0); self.src=allsrc(1); return
            if op.startswith("s_cmp"):
                self.src=allsrc(0); return
            if op.startswith("s_setreg"):
                self.src=allsrc(0); return
            self.dst=R(0); self.src=allsrc(1)
            if "saveexec" in op: self.dst|={('s','exec')}; self.src|={('s','exec')}
            return
        raise ValueError("cannot classify: "+text)

def isv(r): return r[0] in ('v','a')
def need(prev, cur):
    n=0
    pv = prev.cls in ("valu","trans")
    cv = cur.cls in ("valu","trans")
    pdv = {r for r in prev.dst if isv(r)}
    pds = {r for r in prev.dst if not isv(r)}
    if pv:
        if cur.cls=="mfma" and (pdv & cur.src): n=max(n,2)
        if cur.cls=="mfma" and ('s','exec') in pds: n=max(n,4)
        if cv and cur.dpp and (pdv & cur.src): n=max(n,2)
        if cv and cur.dpp and ('s','exec') in pds: n=max(n,5)
        if cur.op.startswith("v_permlane") and (pdv & cur.src): n=max(n,2)
        if cur.op.startswith(("v_readlane","v_readfirstlane")) and (pdv & cur.src): n=max(n,1)
        if cur.op.startswith(("v_readlane","v_readfirstlane","v_writelane","v_permlane")) and ('s','exec') in pds: n=max(n,4)
        if prev.cls=="trans" and cv and (pdv & cur.src): n=max(n,1)
        if prev.cls=="trans" and cur.cls in("vmem","vmem_lds","ds") and (pdv & cur.src): n=max(n,1)
        if pds:
            if cur.cls in ("vmem","vmem_lds") and (pds & cur.src): n=max(n,5)
            if cv and (pds & cur.src):
                n=max(n, 4 if cur.op.startswith(("v_readlane","v_writelane")) else 2)
            if cur.cls in ("salu","smem") and (pds & cur.src): n=max(n,3 if cur.cls=="salu" else 5)
    if prev.cls=="mfma":
        P=prev.passes
        d=prev.dst
        if cur.cls=="mfma":
            if d & cur.srcC:
                if not (cur.srcC==d and cur.passes==P): n=max(n, {4:6,8:10}[P])
            if d & (cur.src - cur.srcC): n=max(n,{4:8,8:12}[P])
        elif cv:
            if d & (cur.src|cur.dst): n=max(n,{4:8,8:12}[P])
            if prev.srcC & cur.dst: n=max(n,{4:3,8:7}[P])
        elif cur.cls in ("vmem","vmem_lds","ds"):
            if d & (cur.src|cur.dst): n=max(n,{4:8,8:12}[P])
    if prev.cls=="salu" and ('s','m0') in prev.dst and cur.cls=="vmem_lds": n=max(n,1)
    if prev.wide_data and (prev.wide_data & cur.dst):
        n=max(n, 2 if cv else 1)
    return n

WINDOW=24
def pad(ins_list):
    out=[]
    for cur in ins_list:
        if cur.cls!="none":
            dist=0; req=0
            for prev in reversed(out[-WINDOW*2:]):
                if prev.cls=="none": continue
                k=need(prev,cur)
                if k>dist: req=max(req,k-dist)
                dist+=prev.nstates
                if dist>=20: break
            while req>0:
                k=min(req,16)
                out.append(Ins(f"s_nop {k-1}")); req-=k
        out.append(cur)
    return out

def check_backedge(body):
    seq=[i for i in body if i.cls!="none"]
    extra=0
    for ci,cur in enumerate(seq[:WINDOW]):
        dist=sum(x.nstates for x in seq[:ci])
        for prev in reversed(seq):
            k=need(prev,cur)
            if k>dist: extra=max(extra,k-dist)
            dist+=prev.nstates
            if dist>=20: break
    return extra

class Asm:
    def __init__(self):
        self.ins=[]; self.prot=set()
    def protect(self, regs): self.prot |= {('s',r) for r in regs}
    def unprotect(self, regs=None):
        if regs is None: self.prot=set()
        else: self.prot -= {('s',r) for r in regs}
    def __call__(self, text):
        for l in text.split('\n'):
            l=l.strip()
            if l:
                i=Ins(l)
                bad=i.dst & self.prot
                if bad: raise ValueError(f"write to protected SGPR {bad}: {l}")
                self.ins.append(i)
        return self
    def label(self, name): self.ins.append(Ins(name+":"))
    def comment(self, c): self.ins.append(Ins("; "+c)) if False else None
    def finish(self):
        lst=pad(self.ins)
        changed=True
        while changed:
            changed=False
            labels={i.text.strip()[:-1]:k for k,i in enumerate(lst) if i.is_label}
            for k,i in enumerate(lst):
                if i.is_branch:
                    tgt=i.text.split()[-1]
                    if tgt in labels:
                        t=labels[tgt]
                        if t<k:
                            body=lst[t:k+1]
                            ex=check_backedge(body)
                            if ex>0:
                                lst.insert(k, Ins(f"s_nop {ex-1}")); changed=True; break
                        else:
                            pre=[x for x in lst[max(0,k-WINDOW):k+1] if x.cls!="none"]
                            post=[x for x in lst[t:t+WINDOW] if x.cls!="none"]
                            ex=0
                            for ci,cur in enumerate(post):
                                dist=sum(x.nstates for x in post[:ci])
                                for prev in reversed(pre):
                                    kk=need(prev,cur)
                                    if kk>dist: ex=max(ex,kk-dist)
                                    dist+=prev.nstates
                                    if dist>=20: break
                            if ex>0:
                                lst.insert(k, Ins(f"s_nop {ex-1}")); changed=True; break
        return lst
    def text(self):
        out=[]
        for i in self.finish():
            out.append(i.text if i.is_label else "    "+i.text)
        return "\n".join(out)+"\n"

def vr(a,n=1): return f"v{a}" if n==1 else f"v[{a}:{a+n-1}]"
def sr(a,n=1): return f"s{a}" if n==1 else f"s[{a}:{a+n-1}]"
```

```python
from asmlib import *
T=2048; D=640; F=1536; NS=192
XBYTES=T*D*2
WS_XN  = 0x000000
WS_XNT = 0x280000
WS_YT  = 0x500000
WS_H   = 0x780000
WS_FLG = 0xE00000
KA = dict(x=0,Are=8,Aim=16,Bre=24,Bim=32,Cre=40,Cim=48,ldt=56,dsk=64,bx=72,w1=80,w3=88,w2=96,out=104,dbg=112,ws=120)

def srd(a, s, base, nbytes, off=0):
    a.unprotect(range(s,s+4))
    if off:
        a(f"s_add_u32 s{s}, s{base}, {off}")
        a(f"s_addc_u32 s{s+1}, s{base+1}, 0")
    else:
        a(f"s_mov_b32 s{s}, s{base}")
        a(f"s_mov_b32 s{s+1}, s{base+1}")
    a(f"s_mov_b32 s{s+2}, {nbytes}")
    a(f"s_mov_b32 s{s+3}, 0x00020000")
    a.protect(range(s,s+4))

def bf16r(a, dst, src):
    a(f"v_cvt_pk_bf16_f32 v{dst}, v{src}, v{src}")
    a(f"v_lshlrev_b32 v{dst}, 16, v{dst}")

def reduce32(a, v, t):
    a(f"v_add_f32_dpp v{v}, v{v}, v{v} quad_perm:[1,0,3,2] row_mask:0xf bank_mask:0xf")
    a(f"v_add_f32_dpp v{v}, v{v}, v{v} quad_perm:[2,3,0,1] row_mask:0xf bank_mask:0xf")
    a(f"v_add_f32_dpp v{v}, v{v}, v{v} row_half_mirror row_mask:0xf bank_mask:0xf")
    a(f"v_add_f32_dpp v{v}, v{v}, v{v} row_mirror row_mask:0xf bank_mask:0xf")
    a(f"v_mov_b32 v{t}, v{v}")
    a(f"v_permlane16_swap_b32 v{v}, v{t}")
    a(f"v_add_f32 v{v}, v{v}, v{t}")

def kernel_text(name, body, nvgpr, nagpr=0, nsgpr=96):
    ao = (nvgpr+3)//4*4
    nfv = ao+nagpr if nagpr else nvgpr
    return f""".text
.globl {name}
.p2align 8
.type {name},@function
{name}:
{body}
.section .rodata,"a"
.p2align 6
.amdhsa_kernel {name}
  .amdhsa_next_free_vgpr {nfv}
  .amdhsa_next_free_sgpr {nsgpr}
  .amdhsa_accum_offset {ao}
  .amdhsa_group_segment_fixed_size 0
  .amdhsa_kernarg_size 128
  .amdhsa_user_sgpr_count 2
  .amdhsa_user_sgpr_kernarg_segment_ptr 1
  .amdhsa_system_sgpr_workgroup_id_x 1
.end_amdhsa_kernel
"""
```

```python
from common import *
CS=4288
KREG=4*CS
UREG=47*128
WREG=KREG+UREG
LOG2E=0x3fb8aa3b
INV2PI=0x3e22f983

class CPool:
    def __init__(self, base, n): self.free=[base+2*i for i in range(n)]
    def get(self): return self.free.pop(0)
    def put(self,r): self.free.insert(0,r)

def cmul(a, d, x, y, pk=True, tmp=None):
    if pk:
        a(f"v_pk_mul_f32 v[{d}:{d+1}], v[{x}:{x+1}], v[{y}:{y+1}] op_sel:[0,0] op_sel_hi:[0,1]")
        a(f"v_pk_fma_f32 v[{d}:{d+1}], v[{x}:{x+1}], v[{y}:{y+1}], v[{d}:{d+1}] op_sel:[1,1,0] op_sel_hi:[1,0,1] neg_lo:[1,0,0]")
    else:
        a(f"v_mul_f32 v{d}, v{x}, v{y}")
        a(f"v_mul_f32 v{d+1}, v{x}, v{y+1}")
        a(f"v_fma_f32 v{d}, -v{x+1}, v{y+1}, v{d}")
        a(f"v_fmac_f32 v{d+1}, v{x+1}, v{y}")

def cmul2(a, jobs, pk=True):
    if pk:
        for d,x,y in jobs:
            a(f"v_pk_mul_f32 v[{d}:{d+1}], v[{x}:{x+1}], v[{y}:{y+1}] op_sel:[0,0] op_sel_hi:[0,1]")
        for d,x,y in jobs:
            a(f"v_pk_fma_f32 v[{d}:{d+1}], v[{x}:{x+1}], v[{y}:{y+1}], v[{d}:{d+1}] op_sel:[1,1,0] op_sel_hi:[1,0,1] neg_lo:[1,0,0]")
    else:
        for d,x,y in jobs:
            a(f"v_mul_f32 v{d}, v{x}, v{y}"); a(f"v_mul_f32 v{d+1}, v{x}, v{y+1}")
        for d,x,y in jobs:
            a(f"v_fma_f32 v{d}, -v{x+1}, v{y+1}, v{d}"); a(f"v_fmac_f32 v{d+1}, v{x+1}, v{y}")

def cexp(a, d, zr, zi, scale, t):
    if scale is None:
        a(f"v_exp_f32 v{t}, v{zr}")
        a(f"v_fract_f32 v{t+1}, v{zi}")
    else:
        a(f"v_mul_f32 v{t}, {scale}, v{zr}")
        a(f"v_mul_f32 v{t+1}, {scale}, v{zi}")
        a(f"v_exp_f32 v{t}, v{t}")
        a(f"v_fract_f32 v{t+1}, v{t+1}")
    a(f"v_cos_f32 v{d}, v{t+1}")
    a(f"v_sin_f32 v{d+1}, v{t+1}")
    a(f"v_mul_f32 v{d}, v{d}, v{t}")
    a(f"v_mul_f32 v{d+1}, v{d+1}, v{t}")

V_LANE=1; V_PAR=8
V_DT=26
V_ZR=28; V_ZI=29; V_CB=30
V_E1=32; V_E2=34; V_E4=36; V_E8=38; V_E16=40; V_E256=42
V_T=44
V_POOL=48
V_PK=80
V_FA=88
V_KACC=104
V_SW=120; V_SWX=121; V_TR0=122; V_TR1=123
V_X=124
V_ACC=112+24
V_A=168
V_B=200
V_BA=232
V_AA=248

def c_load_params(a, s_ch):
    names=["Are","Aim","Bre","Bim","Cre","Cim"]
    for i,n in enumerate(names): a(f"s_load_dwordx2 s[{4+2*i}:{5+2*i}], s[0:1], {KA[n]}")
    a(f"s_load_dwordx2 s[16:17], s[0:1], {KA['ldt']}")
    a(f"s_load_dwordx2 s[18:19], s[0:1], {KA['ws']}")
    a(f"v_and_b32 v{V_LANE}, 63, v0")
    a("s_waitcnt lgkmcnt(0)")
    for i in range(6): srd(a, 24+4*i, 4+2*i, D*NS*2)
    srd(a, 48, 16, D*2)
    srd(a, 52, 18, XBYTES, WS_XNT)
    srd(a, 56, 18, XBYTES, WS_YT)
    a(f"s_mul_i32 s20, s{s_ch}, {NS*2}")
    a(f"v_lshlrev_b32 v2, 1, v{V_LANE}")
    a(f"s_lshl_b32 s21, s{s_ch}, 1")
    a(f"v_mov_b32 v3, s21")
    a(f"buffer_load_ushort v{V_DT}, v3, s[48:51], 0 offen")
    for c in range(3):
        for i in range(6):
            a(f"buffer_load_ushort v{V_PAR+6*c+i}, v2, s[{24+4*i}:{27+4*i}], s20 offen offset:{128*c}")

def c_init_lds(a, s_wb):
    a(f"v_mov_b32 v{V_X}, 0"); a(f"v_mov_b32 v{V_X+1}, 0"); a(f"v_mov_b32 v{V_X+2}, 0"); a(f"v_mov_b32 v{V_X+3}, 0")
    a(f"v_lshlrev_b32 v{V_X+4}, 4, v{V_LANE}")
    a(f"v_add_u32 v{V_X+4}, s{s_wb}, v{V_X+4}")
    a(f"ds_write_b128 v{V_X+4}, v[{V_X}:{V_X+3}] offset:{KREG}")
    a(f"ds_write_b128 v{V_X+4}, v[{V_X}:{V_X+3}] offset:{KREG+1024}")

def c_dma_u(a, s_ch, s_wb, flags=""):
    L=V_LANE; t=V_X+4
    a(f"v_lshrrev_b32 v{t}, 3, v{L}")
    a(f"v_add_u32 v{t+1}, 7, v{t}")
    a(f"v_and_b32 v{t+1}, 7, v{t+1}")
    a(f"v_and_b32 v{t+2}, 7, v{L}")
    a(f"v_xor_b32 v{t+1}, v{t+1}, v{t+2}")
    a(f"v_lshlrev_b32 v{t}, 7, v{t}")
    a(f"v_lshl_add_u32 v{t}, v{t+1}, 4, v{t}")
    a(f"s_lshl_b32 s20, s{s_ch}, 12")
    a(f"s_add_u32 s21, s{s_wb}, {KREG+15*128}")
    a(f"s_mov_b32 m0, s21")
    for k in range(4):
        a(f"buffer_load_dwordx4 v{t}, s[52:55], s20 offen offset:{1024*k} {flags} lds")

def kgen(a, s_wb, pk=True):
    L=V_LANE
    a("s_waitcnt vmcnt(18)")
    a(f"v_lshlrev_b32 v{V_DT}, 16, v{V_DT}")
    a(f"v_mul_f32 v{V_DT}, {LOG2E:#x}, v{V_DT}")
    a(f"v_exp_f32 v{V_DT}, v{V_DT}")
    bf16r(a, V_DT, V_DT)
    a(f"v_and_b32 v{V_T}, 7, v{L}")
    a(f"v_lshlrev_b32 v{V_SW}, 7, v{L}")
    a(f"v_lshl_add_u32 v{V_SW}, v{V_T}, 4, v{V_SW}")
    a(f"v_add_u32 v{V_SW}, s{s_wb}, v{V_SW}")
    t=V_T
    for j in range(2):
        a(f"v_lshrrev_b32 v{t}, 5, v{L}")
        a(f"v_lshlrev_b32 v{t}, 2, v{t}")
        a(f"v_bfe_u32 v{t+1}, v{L}, 3, 1")
        a(f"v_add_u32 v{t}, v{t}, v{t+1}")
        if j: a(f"v_add_u32 v{t}, 2, v{t}")
        a(f"v_bfe_u32 v{t+1}, v{L}, 2, 1")
        a(f"v_lshlrev_b32 v{t+1}, 2, v{t+1}")
        a(f"v_bfe_u32 v{t+2}, v{L}, 4, 1")
        a(f"v_lshl_add_u32 v{t+1}, v{t+2}, 1, v{t+1}")
        a(f"v_bfe_u32 v{t+2}, v{L}, 1, 1")
        a(f"v_add_u32 v{t+1}, v{t+1}, v{t+2}")
        a(f"v_xor_b32 v{t+1}, v{t+1}, v{t}")
        a(f"v_lshlrev_b32 v{t+1}, 4, v{t+1}")
        a(f"v_lshl_add_u32 v{t+1}, v{t}, 7, v{t+1}")
        a(f"v_and_b32 v{t+2}, 1, v{L}")
        a(f"v_lshl_add_u32 v{t+1}, v{t+2}, 3, v{t+1}")
        a(f"v_add_u32 v{V_TR0+j}, s{s_wb}, v{t+1}")
    for r in range(16): a(f"v_mov_b32 v{V_KACC+r}, 0")
    def emit_group(vals, side, q, negim):
        vals=[v if v is not None else vals[0] for v in vals]
        for k in range(4): a(f"v_cvt_pk_bf16_f32 v{V_PK+k}, v{vals[2*k]}, v{vals[2*k+1]}")
        s="-" if negim else ""
        for k in range(4): a(f"v_cvt_pk_bf16_f32 v{V_PK+4+k}, {s}v{vals[2*k]+1}, {s}v{vals[2*k+1]+1}")
        a(f"v_xor_b32 v{V_SWX}, {q<<4}, v{V_SW}")
        a(f"ds_write_b128 v{V_SWX}, v[{V_PK}:{V_PK+3}] offset:{side*8192}")
        a(f"v_xor_b32 v{V_SWX}, {(4+q)<<4}, v{V_SW}")
        a(f"ds_write_b128 v{V_SWX}, v[{V_PK+4}:{V_PK+7}] offset:{side*8192}")
    for c in range(3):
        P=V_PAR+6*c
        a(f"s_waitcnt vmcnt({12-6*c})")
        for i in range(6): a(f"v_lshlrev_b32 v{P+i}, 16, v{P+i}")
        a(f"v_mul_f32 v{V_ZR}, v{V_DT}, v{P}")
        a(f"v_mul_f32 v{V_ZI}, v{V_DT}, v{P+1}")
        a(f"v_mul_f32 v{P+2}, v{V_DT}, v{P+2}")
        a(f"v_mul_f32 v{P+3}, v{V_DT}, v{P+3}")
        a(f"v_mul_f32 v{V_ZR}, {LOG2E:#x}, v{V_ZR}")
        a(f"v_mul_f32 v{V_ZI}, {INV2PI:#x}, v{V_ZI}")
        cmul(a, V_CB, P+4, P+2, pk=False)
        cexp(a, V_E1, V_ZR, V_ZI, None, V_T)
        cexp(a, V_E8, V_ZR, V_ZI, "0x41000000", V_T)
        cexp(a, V_E256, V_ZR, V_ZI, "0x43800000", V_T)
        cmul2(a, [(V_E2,V_E1,V_E1),(V_E16,V_E8,V_E8)], pk)
        cmul(a, V_E4, V_E2, V_E2, pk)
        pool=CPool(V_POOL,16)
        g=pool.get
        W=[None]*8; W[0]=V_CB
        W[1]=g(); V256=g(); cmul2(a,[(W[1],W[0],V_E1),(V256,V_CB,V_E256)],pk)
        W[2]=g(); W[3]=g(); V258=g(); cmul2(a,[(W[2],W[0],V_E2),(W[3],W[1],V_E2),(V258,V256,V_E2)],pk)
        V260=g(); W[4]=g(); W[5]=g(); cmul2(a,[(V260,V258,V_E2),(W[4],W[2],V_E2),(W[5],W[3],V_E2)],pk)
        emit_group([W[0],W[1],W[2],W[3],V256,V256,V258,V260],0,0,True)
        for r in (W[1],W[2],W[3],V258): pool.put(r)
        W[6]=g(); W[7]=g(); V262=g(); V512=g()
        cmul2(a,[(W[6],W[4],V_E2),(W[7],W[5],V_E2),(V262,V260,V_E2),(V512,V256,V_E256)],pk)
        pool.put(V256)
        V264=g(); V516=g(); V768=g(); cmul2(a,[(V264,V262,V_E2),(V516,V512,V_E4),(V768,V512,V_E256)],pk)
        emit_group([W[4],W[5],W[6],W[7],V260,V260,V262,V264],0,1,True)
        for r in (W[4],W[5],W[6],W[7],V260,V262,V264): pool.put(r)
        V520=g(); V772=g(); V1024=g(); cmul2(a,[(V520,V516,V_E4),(V772,V768,V_E4),(V1024,V768,V_E256)],pk)
        V776=g(); V1280=g(); V1032=g(); cmul2(a,[(V776,V772,V_E4),(V1280,V1024,V_E256),(V1032,V1024,V_E8)],pk)
        V1536=g(); V1288=g(); cmul2(a,[(V1536,V1280,V_E256),(V1288,V1280,V_E8)],pk)
        emit_group([V512,V516,V520,V1024,V768,V772,V776,V1536],0,2,True)
        for r in (V512,V516,V520,V1024,V768,V772,V776): pool.put(r)
        V1544=g(); V1792=g(); cmul2(a,[(V1544,V1536,V_E8),(V1792,V1536,V_E256)],pk)
        V1800=g(); cmul(a,V1800,V1792,V_E8,pk)
        emit_group([V1032,V1280,V1288,None,V1544,V1792,V1800,None],0,3,True)
        G=[V_POOL+2*i for i in range(8)]
        H=[V_POOL+16+2*i for i in range(8)]
        a(f"v_mov_b32 v{G[0]}, 1.0"); a(f"v_mov_b32 v{G[0]+1}, 0")
        a(f"v_mov_b32 v{G[1]}, v{V_E8}"); a(f"v_mov_b32 v{G[1]+1}, v{V_E8+1}")
        prev=None
        cur,oth=G,H
        for q in range(4):
            if q>0:
                cmul2(a,[(cur[0],oth[6],V_E16),(cur[1],oth[7],V_E16)],pk)
            for i in range(2,8,2):
                cmul2(a,[(cur[i],cur[i-2],V_E16),(cur[i+1],cur[i-1],V_E16)],pk)
            emit_group(cur,1,q,False)
            cur,oth=oth,cur
        a("s_waitcnt lgkmcnt(0)")
        def rd(s,buf):
            b=V_FA+8*buf
            a(f"ds_read_b64_tr_b16 v[{b}:{b+1}], v{V_TR0} offset:{s*1024}")
            a(f"ds_read_b64_tr_b16 v[{b+2}:{b+3}], v{V_TR1} offset:{s*1024}")
            a(f"ds_read_b64_tr_b16 v[{b+4}:{b+5}], v{V_TR0} offset:{s*1024+8192}")
            a(f"ds_read_b64_tr_b16 v[{b+6}:{b+7}], v{V_TR1} offset:{s*1024+8192}")
        rd(0,0)
        for s in range(8):
            if s<7:
                rd(s+1,(s+1)&1); a("s_waitcnt lgkmcnt(4)")
            else: a("s_waitcnt lgkmcnt(0)")
            b=V_FA+8*(s&1)
            a(f"v_mfma_f32_32x32x16_bf16 v[{V_KACC}:{V_KACC+15}], v[{b}:{b+3}], v[{b+4}:{b+7}], v[{V_KACC}:{V_KACC+15}]")
    K=V_KACC; P=V_POOL
    t=V_T
    a(f"v_and_b32 v{t}, 31, v{L}")
    a(f"v_lshrrev_b32 v{t+1}, 5, v{L}")
    a(f"v_lshlrev_b32 v{t}, 4, v{t}")
    a(f"v_sub_u32 v{t}, {4080-1024}, v{t}")
    a(f"v_add_u32 v{t}, s{s_wb}, v{t}")
    a(f"v_lshlrev_b32 v{t+2}, 9, v{t+1}")
    a(f"v_sub_u32 v{V_X}, v{t}, v{t+2}")
    a(f"v_sub_u32 v{V_X+1}, v{V_X}, v{t+2}")
    a(f"v_subrev_u32 v{V_X+1}, {2560-1024}, v{V_X+1}")
    a(f"v_and_b32 v{t}, 1, v{L}")
    a(f"v_cmp_eq_u32 vcc, 1, v{t}")
    a(f"v_cndmask_b32 v{t+2}, v{K+11}, v{K+12}, vcc")
    a(f"v_cndmask_b32 v{t+3}, v{K+13}, v{K+14}, vcc")
    for k in range(4): a(f"v_cvt_pk_bf16_f32 v{P+k}, v{K+7-2*k}, v{K+6-2*k}")
    a(f"ds_write_b128 v{V_X}, v[{P}:{P+3}] offset:1024")
    e0,e1,e2=K+8,K+9,K+10
    for k,(x,y) in enumerate([(e2,e2),(e1,e1),(e1,e0),(e0,e0)]): a(f"v_cvt_pk_bf16_f32 v{P+4+k}, v{x}, v{y}")
    a(f"ds_write_b128 v{V_X}, v[{P+4}:{P+7}]")
    for k,(x,y) in enumerate([(K+12,K+12),(K+12,t+2),(K+11,K+11),(K+11,K+11)]): a(f"v_cvt_pk_bf16_f32 v{P+8+k}, v{x}, v{y}")
    a(f"ds_write_b128 v{V_X+1}, v[{P+8}:{P+11}] offset:512")
    for k,(x,y) in enumerate([(K+14,K+14),(K+14,t+3),(K+13,K+13),(K+13,K+13)]): a(f"v_cvt_pk_bf16_f32 v{P+12+k}, v{x}, v{y}")
    a(f"ds_write_b128 v{V_X+1}, v[{P+12}:{P+15}]")
    a(f"v_bfe_u32 v{t}, v{L}, 3, 2")
    a(f"v_mul_u32_u24 v{t}, {CS}, v{t}")
    a(f"v_and_b32 v{t+1}, 7, v{L}")
    a(f"v_lshl_add_u32 v{t}, v{t+1}, 4, v{t}")
    a(f"v_add_u32 v{t}, s{s_wb}, v{t}")
    for k in range(4): a(f"v_mov_b32 v{P+16+k}, 0")
    a(f"ds_write_b128 v{t}, v[{P+16}:{P+19}] offset:4096")
    a(f"v_lshlrev_b32 v{t}, 4, v{L}")
    a(f"v_add_u32 v{t}, s{s_wb}, v{t}")
    a("s_waitcnt lgkmcnt(0)")
    for k in range(4):
        Dk=P+8*(k&1)
        a(f"ds_read_b128 v[{Dk}:{Dk+3}], v{t} offset:{1024*k}")
        a(f"ds_read_b64 v[{Dk+4}:{Dk+5}], v{t} offset:{1024*k+16}")
        a("s_waitcnt lgkmcnt(0)")
        O=P+16
        for i in range(4): a(f"v_alignbit_b32 v{O+i}, v{Dk+i+1}, v{Dk+i}, 16")
        for i in range(4): a(f"v_mov_b32 v{O+4+i}, v{Dk+i+1}")
        for i in range(4): a(f"v_alignbit_b32 v{O+8+i}, v{Dk+i+2}, v{Dk+i+1}, 16")
        a(f"ds_write_b128 v{t}, v[{O}:{O+3}] offset:{1024*k+CS}")
        a(f"ds_write_b128 v{t}, v[{O+4}:{O+7}] offset:{1024*k+2*CS}")
        a(f"ds_write_b128 v{t}, v[{O+8}:{O+11}] offset:{1024*k+3*CS}")

def conv(a, s_ch, s_wb, cflag=""):
    L=V_LANE; t=V_T
    a(f"v_and_b32 v{t}, 15, v{L}")
    a(f"v_sub_u32 v{t+1}, 3, v{t}")
    a(f"v_and_b32 v{t+1}, 3, v{t+1}")
    a(f"v_mul_u32_u24 v{t+1}, {CS}, v{t+1}")
    a(f"v_and_b32 v{t+2}, 12, v{t}")
    a(f"v_lshlrev_b32 v{t+2}, 1, v{t+2}")
    a(f"v_sub_u32 v{t+1}, v{t+1}, v{t+2}")
    a(f"v_lshrrev_b32 v{t+3}, 4, v{L}")
    a(f"v_lshl_add_u32 v{t+1}, v{t+3}, 4, v{t+1}")
    a(f"v_add_u32 v{t+1}, {2*2044-32*127}, v{t+1}")
    a(f"v_add_u32 v{V_AA}, s{s_wb}, v{t+1}")
    a(f"s_add_u32 s22, s{s_wb}, {KREG}")
    a(f"v_lshlrev_b32 v{t+1}, 7, v{t}")
    a(f"v_add_u32 v{t+1}, s22, v{t+1}")
    for rho in range(8):
        a(f"v_add_u32 v{t+2}, {15-rho}, v{t}")
        a(f"v_and_b32 v{t+2}, 7, v{t+2}")
        a(f"v_xor_b32 v{t+2}, v{t+2}, v{t+3}")
        a(f"v_lshl_add_u32 v{V_BA+2*rho}, v{t+2}, 4, v{t+1}")
        a(f"v_xor_b32 v{V_BA+2*rho+1}, 64, v{V_BA+2*rho}")
    for r in range(32): a(f"v_mov_b32 v{V_ACC+r}, 0")
    def aslot(x): return V_A+4*(x%8)
    def rdA(x):
        off=32*(x+127)
        s=aslot(x)
        a(f"ds_read_b64 v[{s}:{s+1}], v{V_AA} offset:{off}")
        a(f"ds_read_b64 v[{s+2}:{s+3}], v{V_AA} offset:{off+8}")
    def bslot(sg,n): return V_B+8*(sg%4)+4*n
    def rdB(sg):
        tau=sg//2; u4=1 if sg%2==0 else 0
        cnt=0
        for n in range(2):
            if n==0 and sg>=32: continue
            off=128*(15-tau)+2048*n
            s=bslot(sg,n)
            a(f"ds_read_b128 v[{s}:{s+3}], v{V_BA+2*(tau%8)+u4} offset:{off}")
            cnt+=1
        return cnt
    def rd(sg):
        c=0
        if sg==0:
            for x in (2,1,0,-1): rdA(x); c+=2
        else:
            for x in (-2*sg,-2*sg-1): rdA(x); c+=2
        c+=rdB(sg)
        return c
    a("s_waitcnt vmcnt(0) lgkmcnt(0)")
    n0=rd(0); n1=rd(1)
    cnt={0:n0,1:n1}
    for sg in range(64):
        nxt=cnt.get(sg+1,0)
        a(f"s_waitcnt lgkmcnt({nxt})")
        if sg+2<64: cnt[sg+2]=rd(sg+2)
        for n in (1,0):
            if n==0 and sg>=32: continue
            for m in range(4):
                acc=V_ACC+4*(2*m+n)
                A=aslot(2-2*sg-m); B=bslot(sg,n)
                a(f"v_mfma_f32_16x16x32_bf16 v[{acc}:{acc+3}], v[{A}:{A+3}], v[{B}:{B+3}], v[{acc}:{acc+3}]")
    a(f"v_and_b32 v{t}, 15, v{L}")
    a(f"v_lshrrev_b32 v{t+1}, 4, v{L}")
    a(f"v_lshrrev_b32 v{t+2}, 1, v{t+1}")
    a(f"v_and_b32 v{t+3}, 7, v{t}")
    a(f"v_xor_b32 v{t+2}, v{t+2}, v{t+3}")
    a(f"v_lshlrev_b32 v{t+2}, 4, v{t+2}")
    a(f"v_lshl_add_u32 v{t+2}, v{t}, 7, v{t+2}")
    a(f"v_and_b32 v{t+1}, 1, v{t+1}")
    a(f"v_lshl_add_u32 v{t+2}, v{t+1}, 3, v{t+2}")
    a(f"v_add_u32 v{V_X}, s{s_wb}, v{t+2}")
    for m in range(4):
        a(f"v_xor_b32 v{V_X+1}, {32*m}, v{V_X}")
        for n in range(2):
            acc=V_ACC+4*(2*m+n); p=V_POOL+2*(2*m+n)
            a(f"v_cvt_pk_bf16_f32 v{p}, v{acc}, v{acc+1}")
            a(f"v_cvt_pk_bf16_f32 v{p+1}, v{acc+2}, v{acc+3}")
            a(f"ds_write_b64 v{V_X+1}, v[{p}:{p+1}] offset:{2048*n}")
    a(f"v_lshrrev_b32 v{t}, 3, v{L}")
    a(f"v_and_b32 v{t+1}, 7, v{L}")
    a(f"v_xor_b32 v{t+1}, v{t+1}, v{t}")
    a(f"v_lshlrev_b32 v{t+1}, 4, v{t+1}")
    a(f"v_lshl_add_u32 v{t+1}, v{t}, 7, v{t+1}")
    a(f"v_add_u32 v{t+1}, s{s_wb}, v{t+1}")
    a(f"v_lshlrev_b32 v{t+2}, 4, v{L}")
    a(f"s_lshl_b32 s20, s{s_ch}, 12")
    a("s_waitcnt lgkmcnt(0)")
    for k in range(4): a(f"ds_read_b128 v[{V_A+4*k}:{V_A+4*k+3}], v{t+1} offset:{1024*k}")
    for k in range(4):
        a(f"s_waitcnt lgkmcnt({3-k})")
        a(f"buffer_store_dwordx4 v[{V_A+4*k}:{V_A+4*k+3}], v{t+2}, s[56:59], s20 offen offset:{1024*k} {cflag}")

def role_c(a, swg, pfx="c", pk=True, cflag="", lflag=""):
    a("v_lshrrev_b32 v2, 6, v0")
    a(f"s_lshr_b32 s60, s{swg}, 1")
    a("v_readfirstlane_b32 s61, v2")
    a("s_mul_i32 s60, s60, 5")
    a(f"s_and_b32 s62, s{swg}, 1")
    a("s_mul_i32 s63, s62, 3")
    a("s_add_u32 s60, s60, s63")
    a("s_add_u32 s60, s60, s61")
    a("s_sub_u32 s62, 3, s62")
    a("s_cmp_ge_u32 s61, s62")
    a(f"s_cbranch_scc1 {pfx}_end")
    a(f"s_mul_i32 s64, s61, {WREG}")
    c_load_params(a, 60)
    c_init_lds(a, 64)
    a("s_waitcnt lgkmcnt(0)")
    kgen(a, 64, pk)
    c_dma_u(a, 60, 64, lflag)
    conv(a, 60, 64, cflag)
    a.label(f"{pfx}_end")
```

```python
from common import *
NLOG2E=0xbfb8aa3b
G1_STAGE=20480
def g1_map(a, sgi, s_rt, s_fc):
    a(f"s_and_b32 s20, s{sgi}, 7")
    a(f"s_lshr_b32 s21, s{sgi}, 3")
    a(f"s_lshr_b32 s22, s20, 1")
    a(f"s_lshl_b32 s22, s22, 2")
    a(f"s_and_b32 s23, s21, 3")
    a(f"s_add_u32 s{s_rt}, s22, s23")
    a(f"s_and_b32 s22, s20, 1")
    a(f"s_lshl_b32 s22, s22, 3")
    a(f"s_lshr_b32 s23, s21, 2")
    a(f"s_add_u32 s{s_fc}, s22, s23")

def role_g1(a, sgi, pfx="g1", aflag="", cflag="", a_src="xn", exact=True):
    S_RT,S_FC=60,61; S_W=62
    ACC=64
    FA=160
    VX=2; VW=3
    VRX=6; VRW=8
    g1_map(a, sgi, S_RT, S_FC)
    a(f"s_load_dwordx2 s[4:5], s[0:1], {KA['ws']}")
    a(f"s_load_dwordx2 s[6:7], s[0:1], {KA['w1']}")
    a(f"s_load_dwordx2 s[8:9], s[0:1], {KA['w3']}")
    a("v_lshrrev_b32 v12, 6, v0")
    a("v_and_b32 v1, 63, v0")
    a(f"v_readfirstlane_b32 s{S_W}, v12")
    a("s_waitcnt lgkmcnt(0)")
    srd(a, 24, 4, XBYTES, WS_XN)
    srd(a, 36, 4, T*F*2, WS_H)
    a(f"s_cmp_ge_u32 s{S_W}, 2")
    a("s_cselect_b32 s28, s8, s6")
    a("s_cselect_b32 s29, s9, s7")
    a(f"s_mov_b32 s30, {D*F*2}")
    a("s_mov_b32 s31, 0x00020000")
    a.protect(range(28,32))
    a("v_lshrrev_b32 v13, 2, v1")
    a("v_lshrrev_b32 v14, 3, v13")
    a("v_and_b32 v15, 3, v1")
    a("v_xor_b32 v16, v15, v14")
    a("v_xor_b32 v17, 2, v16")
    a(f"s_lshl_b32 s20, s{S_RT}, 7")
    a(f"s_lshl_b32 s21, s{S_W}, 5")
    a("s_add_u32 s20, s20, s21")
    a("v_add_u32 v13, s20, v13")
    a("v_mul_u32_u24 v13, 1280, v13")
    a(f"v_lshl_add_u32 v{VX}, v16, 4, v13")
    a(f"v_lshl_add_u32 v11, v17, 4, v13")
    a(f"v_add_u32 v11, {16*1280}, v11")
    a(f"s_and_b32 s21, s{S_W}, 1")
    a("s_mul_i32 s21, s21, 192")
    a(f"s_lshr_b32 s22, s{S_W}, 1")
    a("s_lshl_b32 s22, s22, 1")
    a(f"s_mul_i32 s23, s{S_FC}, 192")
    a("s_mov_b32 s33, 0x15555556")
    for i in range(3):
        a(f"v_add_u32 v13, s21, v1")
        if i: a(f"v_add_u32 v13, {64*i}, v13")
        a("v_mul_hi_u32 v14, v13, s33")
        a("v_mul_u32_u24 v15, 12, v14")
        a("v_sub_u32 v15, v13, v15")
        a("v_xor_b32 v15, s22, v15")
        a("v_mul_u32_u24 v14, 3072, v14")
        a("v_lshl_add_u32 v14, v15, 4, v14")
        a(f"v_add_u32 v{VW+i}, s23, v14")
    a(f"s_lshl_b32 s40, s{S_W}, 11")
    a(f"s_lshr_b32 s41, s{S_W}, 1")
    a("s_mul_i32 s41, s41, 6144")
    a(f"s_and_b32 s42, s{S_W}, 1")
    a("s_mul_i32 s42, s42, 3072")
    a("s_add_u32 s41, s41, s42")
    a("s_add_u32 s41, s41, 8192")
    a(f"s_lshr_b32 s43, s{S_W}, 1")
    a(f"s_and_b32 s44, s{S_W}, 1")
    a("v_and_b32 v13, 31, v1")
    a("v_lshrrev_b32 v14, 5, v1")
    a("v_lshrrev_b32 v15, 3, v13")
    a("v_xor_b32 v15, v15, v14")
    a("v_lshlrev_b32 v13, 6, v13")
    a("s_lshl_b32 s20, s43, 12")
    a("v_add_u32 v13, s20, v13")
    a(f"v_lshl_add_u32 v{VRX}, v15, 4, v13")
    a(f"v_xor_b32 v{VRX+1}, 32, v{VRX}")
    a("v_bfe_u32 v13, v1, 4, 1")
    a("v_bfe_u32 v15, v1, 2, 2")
    a("v_lshl_add_u32 v15, v14, 3, v15")
    a("v_mul_u32_u24 v15, 192, v15")
    a("v_mul_u32_u24 v16, 6144, v13")
    a("v_add_u32 v15, v15, v16")
    a("v_and_b32 v16, 3, v1")
    a("v_lshl_add_u32 v15, v16, 3, v15")
    a("v_add_u32 v15, 8192, v15")
    a("s_mul_i32 s20, s44, 3")
    for mt in range(3):
        a(f"s_add_u32 s21, s20, {mt}")
        a("v_xor_b32 v16, s21, v13")
        a(f"v_lshl_add_u32 v{VRW+mt}, v16, 5, v15")
    for r in range(96): a(f"v_mov_b32 v{ACC+r}, 0")
    def dma(stage, slot, k):
        base=slot*G1_STAGE
        if k<2:
            a(f"s_add_u32 m0, s40, {base+1024*k}")
            a(f"buffer_load_dwordx4 v{VX if k==0 else 11}, s[24:27], s45 offen {aflag} lds")
        else:
            a(f"s_add_u32 m0, s41, {base+1024*(k-2)}")
            a(f"buffer_load_dwordx4 v{VW+k-2}, s[28:31], s46 offen lds")
    def setk(stage):
        a(f"s_mov_b32 s45, {stage*64}")
        a(f"s_mov_b32 s46, {stage*32*3072}")
    def advk():
        a("s_add_u32 s45, s45, 64")
        a(f"s_add_u32 s46, s46, {32*3072}")
    def fr(set_): return FA+20*set_
    def reads(slot, kk, set_):
        b=fr(set_); base=slot*G1_STAGE
        for nt in range(2):
            a(f"ds_read_b128 v[{b+4*nt}:{b+4*nt+3}], v{VRX+kk} offset:{base+nt*2048}")
        for mt in range(3):
            for j in range(2):
                r=b+8+4*mt+2*j
                a(f"ds_read_b64_tr_b16 v[{r}:{r+1}], v{VRW+mt} offset:{base+kk*16*192+j*4*192}")
    def mf(set_, i):
        b=fr(set_); mt,nt=i//2,i%2
        acc=ACC+16*(2*mt+nt)
        a(f"v_mfma_f32_32x32x16_bf16 v[{acc}:{acc+15}], v[{b+8+4*mt}:{b+8+4*mt+3}], v[{b+4*nt}:{b+4*nt+3}], v[{acc}:{acc+15}]")
    for st in range(3):
        setk(st)
        for k in range(5): dma(st, st, k)
    setk(3)
    a("s_waitcnt vmcnt(10)")
    a("s_barrier")
    reads(0,0,0)
    def stage(slot, prefetch, last, wait_n):
        a("s_waitcnt lgkmcnt(0)")
        reads(slot,1,1)
        for i in range(6): mf(0,i)
        if not last:
            a(f"s_waitcnt vmcnt({wait_n}) lgkmcnt(0)")
            a("s_barrier")
            reads((slot+1)%4,0,0)
        else:
            a("s_waitcnt lgkmcnt(0)")
        for i in range(6):
            mf(1,i)
            if prefetch and i<5: dma(None,(slot+3)%4,i)
        if prefetch: advk()
    a("s_mov_b32 s47, 4")
    a.label(f"{pfx}_loop")
    for slot in range(4): stage(slot, True, False, 5)
    a("s_sub_u32 s47, s47, 1")
    a("s_cmp_lg_u32 s47, 0")
    a(f"s_cbranch_scc1 {pfx}_loop")
    stage(0, True, False, 5)
    stage(1, False, False, 5)
    stage(2, False, False, 0)
    stage(3, False, True, 0)
    a("v_and_b32 v13, 31, v1")
    a("v_lshrrev_b32 v14, 5, v1")
    a("v_lshrrev_b32 v15, 4, v13")
    a(f"v_mul_u32_u24 v15, {48*1024}, v15")
    a("v_and_b32 v13, 15, v13")
    a("v_lshl_add_u32 v13, v14, 4, v13")
    a("v_lshl_add_u32 v13, v13, 4, v15")
    a(f"s_lshl_b32 s20, s{S_RT}, 3")
    a("s_lshl_b32 s21, s43, 2")
    a("s_add_u32 s20, s20, s21")
    a(f"s_mul_i32 s20, s20, {48*1024}")
    a(f"s_mul_i32 s21, s{S_FC}, 6")
    a("s_mul_i32 s22, s44, 3")
    a("s_add_u32 s21, s21, s22")
    a(f"s_mov_b32 s33, {NLOG2E:#x}")
    for mt in range(3):
        a(f"s_add_u32 s22, s21, {mt}")
        a("s_lshr_b32 s23, s22, 1")
        a("s_lshl_b32 s23, s23, 10")
        a("s_and_b32 s22, s22, 1")
        a("s_lshl_b32 s22, s22, 9")
        a("s_add_u32 s23, s23, s22")
        a("s_add_u32 s23, s23, s20")
        for nt in range(2):
            acc=ACC+16*(2*mt+nt)
            tt=FA+8*((2*mt+nt)%2)
            for r in range(0,8,2):
                g0,g1,u0,u1=acc+r,acc+r+1,acc+8+r,acc+9+r
                e0,e1=FA+20,FA+21
                if exact:
                    a(f"v_cvt_pk_bf16_f32 v{e0}, v{g0}, v{g1}")
                    a(f"v_cvt_pk_bf16_f32 v{e1}, v{u0}, v{u1}")
                    a(f"v_lshlrev_b32 v{g0}, 16, v{e0}")
                    a(f"v_and_b32 v{g1}, 0xffff0000, v{e0}")
                    a(f"v_lshlrev_b32 v{u0}, 16, v{e1}")
                    a(f"v_and_b32 v{u1}, 0xffff0000, v{e1}")
                a(f"v_mul_f32 v{e0}, s33, v{g0}")
                a(f"v_mul_f32 v{e1}, s33, v{g1}")
                a(f"v_exp_f32 v{e0}, v{e0}")
                a(f"v_exp_f32 v{e1}, v{e1}")
                a(f"v_add_f32 v{e0}, 1.0, v{e0}")
                a(f"v_add_f32 v{e1}, 1.0, v{e1}")
                a(f"v_rcp_f32 v{e0}, v{e0}")
                a(f"v_rcp_f32 v{e1}, v{e1}")
                a(f"v_mul_f32 v{g0}, v{g0}, v{e0}")
                a(f"v_mul_f32 v{g1}, v{g1}, v{e1}")
                if exact:
                    a(f"v_cvt_pk_bf16_f32 v{e0}, v{g0}, v{g1}")
                    a(f"v_lshlrev_b32 v{g0}, 16, v{e0}")
                    a(f"v_and_b32 v{g1}, 0xffff0000, v{e0}")
                a(f"v_mul_f32 v{g0}, v{g0}, v{u0}")
                a(f"v_mul_f32 v{g1}, v{g1}, v{u1}")
                a(f"v_cvt_pk_bf16_f32 v{tt+r//2}, v{g0}, v{g1}")
            so = "s23"
            if nt:
                a(f"s_add_u32 s32, s23, {2*48*1024}"); so="s32"
            a(f"buffer_store_dwordx4 v[{tt}:{tt+3}], v13, s[36:39], {so} offen {cflag}")

G2_STAGE=18432
G2_YB=4*G2_STAGE
def role_g2(a, sgi, pfx="g2", hflag="", yflag=""):
    S_RT,S_CT,S_W=60,61,62
    ACC=64
    FA=96
    VH=2; VW=3
    VRH=6; VRW=7
    a(f"s_and_b32 s20, s{sgi}, 7")
    a(f"s_lshr_b32 s21, s{sgi}, 3")
    a("s_lshl_b32 s20, s20, 2")
    a("s_and_b32 s22, s21, 3")
    a(f"s_add_u32 s{S_RT}, s20, s22")
    a(f"s_lshr_b32 s{S_CT}, s21, 2")
    a(f"s_load_dwordx2 s[4:5], s[0:1], {KA['ws']}")
    a(f"s_load_dwordx2 s[6:7], s[0:1], {KA['w2']}")
    a(f"s_load_dwordx2 s[8:9], s[0:1], {KA['x']}")
    a(f"s_load_dwordx2 s[10:11], s[0:1], {KA['out']}")
    a(f"s_load_dwordx2 s[12:13], s[0:1], {KA['dsk']}")
    a("v_lshrrev_b32 v12, 6, v0")
    a("v_and_b32 v1, 63, v0")
    a(f"v_readfirstlane_b32 s{S_W}, v12")
    a("s_waitcnt lgkmcnt(0)")
    srd(a, 24, 4, T*F*2, WS_H)
    srd(a, 28, 6, F*D*2)
    srd(a, 32, 8, XBYTES)
    srd(a, 36, 10, XBYTES)
    srd(a, 48, 4, XBYTES, WS_XN)
    srd(a, 52, 4, XBYTES, WS_YT)
    srd(a, 56, 12, D*2)
    a(f"s_and_b32 s43, s{S_W}, 1")
    a(f"s_lshr_b32 s44, s{S_W}, 1")
    a(f"v_lshlrev_b32 v{VH}, 4, v1")
    a(f"s_lshl_b32 s20, s{S_RT}, 2")
    a(f"s_add_u32 s20, s20, s{S_W}")
    a(f"s_mul_i32 s20, s20, {48*1024}")
    a(f"v_add_u32 v{VH}, s20, v{VH}")
    a(f"s_lshl_b32 s40, s{S_W}, 10")
    a("s_lshl_b32 s20, s43, 1")
    a("s_mul_i32 s21, s43, 3")
    a("s_add_u32 s21, s21, 4")
    a("s_cmp_eq_u32 s44, 0")
    a("s_cselect_b32 s20, s20, s21")
    a("s_lshl_b32 s41, s20, 10")
    a("s_add_u32 s41, s41, 8192")
    a("s_lshl_b32 s20, s20, 6")
    a(f"s_mul_i32 s23, s{S_CT}, 160")
    a("s_mov_b32 s42, 0x1999999a")
    for i in range(3):
        a("v_add_u32 v13, s20, v1")
        if i: a(f"v_add_u32 v13, {64*i}, v13")
        a("v_mul_hi_u32 v14, v13, s42")
        a("v_mul_u32_u24 v15, 10, v14")
        a("v_sub_u32 v15, v13, v15")
        a("v_mul_u32_u24 v14, 1280, v14")
        a("v_lshl_add_u32 v14, v15, 4, v14")
        a(f"v_add_u32 v{VW+i}, s23, v14")
    a(f"v_lshlrev_b32 v{VRH}, 4, v1")
    a("s_lshl_b32 s20, s43, 11")
    a(f"v_add_u32 v{VRH}, s20, v{VRH}")
    a("v_bfe_u32 v13, v1, 5, 1")
    a("v_lshlrev_b32 v13, 4, v13")
    a("v_bfe_u32 v14, v1, 4, 1")
    a("v_lshl_add_u32 v13, v14, 2, v13")
    a("v_bfe_u32 v14, v1, 2, 2")
    a("v_add_u32 v13, v13, v14")
    a("v_mul_u32_u24 v13, 160, v13")
    a("v_and_b32 v14, 3, v1")
    a("v_lshl_add_u32 v13, v14, 3, v13")
    a("s_mul_i32 s20, s44, 96")
    a("s_add_u32 s20, s20, 8192")
    a(f"v_add_u32 v{VRW}, s20, v13")
    for r in range(24): a(f"v_mov_b32 v{ACC+r}, 0")
    def gen_loop(nd, L):
        nw = 2 if nd==3 else 3
        ndma = 2+nw
        def dma(slot,k):
            base=slot*G2_STAGE
            if k<2:
                a(f"s_add_u32 m0, s40, {base+4096*k}")
                if k==1: a("s_add_u32 s47, s45, 1024")
                a(f"buffer_load_dwordx4 v{VH}, s[24:27], {'s45' if k==0 else 's47'} offen {hflag} lds")
            else:
                a(f"s_add_u32 m0, s41, {base+1024*(k-2)}")
                a(f"buffer_load_dwordx4 v{VW+k-2}, s[28:31], s46 offen lds")
        def setk(st):
            a(f"s_mov_b32 s45, {st*2048}"); a(f"s_mov_b32 s46, {st*64*1280}")
        def advk():
            a("s_add_u32 s45, s45, 2048"); a(f"s_add_u32 s46, s46, {64*1280}")
        def fr(s): return FA+20*s
        def reads(slot,kbl,s):
            b=fr(s); base=slot*G2_STAGE
            for x in range(2):
                a(f"ds_read_b128 v[{b+4*x}:{b+4*x+3}], v{VRH} offset:{base+kbl*4096+x*1024}")
            for dt in range(nd):
                for j in range(2):
                    r=b+8+4*dt+2*j
                    a(f"ds_read_b64_tr_b16 v[{r}:{r+1}], v{VRW} offset:{base+(kbl*32+8*j)*160+dt*32}")
        def mfs(s):
            b=fr(s); out=[]
            for dt in range(nd):
                for x in range(2):
                    acc=ACC+4*(2*dt+x)
                    out.append(f"v_mfma_f32_16x16x32_bf16 v[{acc}:{acc+3}], v[{b+8+4*dt}:{b+8+4*dt+3}], v[{b+4*x}:{b+4*x+3}], v[{acc}:{acc+3}]")
            return out
        for st in range(3):
            setk(st)
            for k in range(ndma): dma(st,k)
        setk(3)
        a(f"s_waitcnt vmcnt({2*ndma})")
        a("s_barrier")
        reads(0,0,0)
        def stage(slot,prefetch,last,wait_n):
            a("s_waitcnt lgkmcnt(0)")
            reads(slot,1,1)
            for m in mfs(0): a(m)
            if not last:
                a(f"s_waitcnt vmcnt({wait_n}) lgkmcnt(0)")
                a("s_barrier")
                reads((slot+1)%4,0,0)
            else: a("s_waitcnt lgkmcnt(0)")
            ms=mfs(1)
            for i,m in enumerate(ms):
                a(m)
                if prefetch and i<ndma: dma((slot+3)%4,i)
            if prefetch:
                for i in range(len(ms),ndma): dma((slot+3)%4,i)
                advk()
        a("s_mov_b32 s63, 5")
        a.label(f"{L}_loop")
        for slot in range(4): stage(slot,True,False,ndma)
        a("s_sub_u32 s63, s63, 1")
        a("s_cmp_lg_u32 s63, 0")
        a(f"s_cbranch_scc1 {L}_loop")
        stage(0,True,False,ndma)
        stage(1,False,False,ndma)
        stage(2,False,False,0)
        stage(3,False,True,0)
        a("v_lshrrev_b32 v13, 2, v1")
        a(f"s_mul_i32 s20, s{S_CT}, 80")
        a("s_mul_i32 s21, s44, 48")
        a("s_add_u32 s20, s20, s21")
        a("v_add_u32 v13, s20, v13")
        a("v_lshlrev_b32 v13, 12, v13")
        a("v_and_b32 v14, 3, v1")
        a("v_lshl_add_u32 v13, v14, 4, v13")
        a(f"s_lshl_b32 s21, s{S_RT}, 7")
        a("s_lshl_b32 s22, s43, 6")
        a("s_add_u32 s21, s21, s22")
        a(f"s_mul_i32 s22, s{S_W}, 3072")
        for dt in range(nd):
            a(f"s_add_u32 m0, s22, {1024*dt}")
            a(f"s_add_u32 s23, s21, {dt*16*4096}")
            a(f"buffer_load_dwordx4 v13, s[52:55], s23 offen {yflag} lds")
        a("v_and_b32 v14, 15, v1")
        a("v_lshrrev_b32 v15, 4, v1")
        a(f"s_lshl_b32 s21, s{S_RT}, 6")
        a("s_lshl_b32 s23, s43, 5")
        a("s_add_u32 s21, s21, s23")
        a("v_add_u32 v14, s21, v14")
        a("v_mul_u32_u24 v14, 1280, v14")
        a("v_lshl_add_u32 v14, v15, 3, v14")
        a("s_lshl_b32 s20, s20, 1")
        a("v_add_u32 v14, s20, v14")
        a("v_lshlrev_b32 v15, 3, v15")
        a("v_add_u32 v15, s20, v15")
        XR=136; NR=160; DR=184
        for dt in range(nd):
            a(f"buffer_load_dwordx2 v[{DR+2*dt}:{DR+2*dt+1}], v15, s[56:59], 0 offen offset:{32*dt}")
            for x in range(2):
                i=2*dt+x
                a(f"s_mov_b32 s23, {x*16*1280}")
                a(f"buffer_load_dwordx2 v[{XR+2*i}:{XR+2*i+1}], v14, s[32:35], s23 offen offset:{32*dt}")
                a(f"buffer_load_dwordx2 v[{NR+2*i}:{NR+2*i+1}], v14, s[48:51], s23 offen offset:{32*dt}")
        a("v_lshrrev_b32 v16, 2, v1")
        a("v_lshlrev_b32 v16, 6, v16")
        a("v_and_b32 v17, 3, v1")
        a("v_lshl_add_u32 v16, v17, 3, v16")
        a("v_add_u32 v16, s22, v16")
        a("s_waitcnt vmcnt(0)")
        YR=192
        for dt in range(nd):
            for x in range(2):
                i=2*dt+x
                a(f"ds_read_b64_tr_b16 v[{YR+2*i}:{YR+2*i+1}], v16 offset:{dt*1024+x*32}")
        a("s_waitcnt lgkmcnt(0)")
        t0,t1,t2,t3=8,9,10,11
        for dt in range(nd):
            for x in range(2):
                i=2*dt+x; acc=ACC+4*i
                for p in range(2):
                    xr,nr,dr,yr=XR+2*i+p,NR+2*i+p,DR+2*dt+p,YR+2*i+p
                    a(f"v_lshlrev_b32 v{t0}, 16, v{nr}"); a(f"v_and_b32 v{t1}, 0xffff0000, v{nr}")
                    a(f"v_lshlrev_b32 v{t2}, 16, v{dr}"); a(f"v_and_b32 v{t3}, 0xffff0000, v{dr}")
                    a(f"v_mul_f32 v{t0}, v{t0}, v{t2}"); a(f"v_mul_f32 v{t1}, v{t1}, v{t3}")
                    a(f"v_cvt_pk_bf16_f32 v{t0}, v{t0}, v{t1}")
                    a(f"v_and_b32 v{t1}, 0xffff0000, v{t0}"); a(f"v_lshlrev_b32 v{t0}, 16, v{t0}")
                    a(f"v_lshlrev_b32 v{t2}, 16, v{yr}"); a(f"v_and_b32 v{t3}, 0xffff0000, v{yr}")
                    a(f"v_add_f32 v{t0}, v{t0}, v{t2}"); a(f"v_add_f32 v{t1}, v{t1}, v{t3}")
                    a(f"v_cvt_pk_bf16_f32 v{t0}, v{t0}, v{t1}")
                    a(f"v_and_b32 v{t1}, 0xffff0000, v{t0}"); a(f"v_lshlrev_b32 v{t0}, 16, v{t0}")
                    a(f"v_lshlrev_b32 v{t2}, 16, v{xr}"); a(f"v_and_b32 v{t3}, 0xffff0000, v{xr}")
                    a(f"v_add_f32 v{t0}, v{t0}, v{t2}"); a(f"v_add_f32 v{t1}, v{t1}, v{t3}")
                    a(f"v_cvt_pk_bf16_f32 v{t0}, v{t0}, v{t1}")
                    a(f"v_and_b32 v{t1}, 0xffff0000, v{t0}"); a(f"v_lshlrev_b32 v{t0}, 16, v{t0}")
                    a(f"v_cvt_pk_bf16_f32 v{t2}, v{acc+2*p}, v{acc+2*p+1}")
                    a(f"v_and_b32 v{t3}, 0xffff0000, v{t2}"); a(f"v_lshlrev_b32 v{t2}, 16, v{t2}")
                    a(f"v_add_f32 v{t0}, v{t0}, v{t2}"); a(f"v_add_f32 v{t1}, v{t1}, v{t3}")
                    a(f"v_cvt_pk_bf16_f32 v{xr}, v{t0}, v{t1}")
                a(f"s_mov_b32 s23, {x*16*1280}")
                a(f"buffer_store_dwordx2 v[{XR+2*i}:{XR+2*i+1}], v14, s[36:39], s23 offen offset:{32*dt}")
    a("s_cmp_eq_u32 s44, 0")
    a(f"s_cbranch_scc0 {pfx}_b")
    gen_loop(3, f"{pfx}_a")
    a(f"s_branch {pfx}_end")
    a.label(f"{pfx}_b")
    gen_loop(2, f"{pfx}_bb")
    a.label(f"{pfx}_end")
```

```python
from common import *
LN_PITCH=1344
def role_ln(a, swg, lds_base=0, cflag="", pfx="ln"):
    a(f"s_load_dwordx2 s[4:5], s[0:1], {KA['x']}")
    a(f"s_load_dwordx2 s[6:7], s[0:1], {KA['ws']}")
    a(f"v_lshrrev_b32 v1, 5, v0")
    a(f"v_and_b32 v2, 31, v0")
    a(f"s_lshl_b32 s20, s{swg}, 3")
    a(f"v_add_u32 v3, s20, v1")
    a(f"v_mul_u32_u24 v3, 1280, v3")
    a(f"v_lshl_add_u32 v3, v2, 4, v3")
    a(f"v_add_u32 v4, 1024, v3")
    a(f"v_bfrev_b32 v5, 1")
    a(f"v_cmp_gt_u32 vcc, 16, v2")
    a(f"v_cndmask_b32 v4, v5, v4, vcc")
    a("s_waitcnt lgkmcnt(0)")
    srd(a, 8, 4, XBYTES)
    srd(a, 12, 6, XBYTES, WS_XN)
    srd(a, 16, 6, XBYTES, WS_XNT)
    a("buffer_load_dwordx4 v[8:11], v3, s[8:11], 0 offen")
    a("buffer_load_dwordx4 v[12:15], v3, s[8:11], 0 offen offset:512")
    a("buffer_load_dwordx4 v[16:19], v4, s[8:11], 0 offen")
    a(f"v_mul_u32_u24 v6, {LN_PITCH}, v1")
    a(f"v_lshl_add_u32 v6, v2, 4, v6")
    if lds_base: a(f"v_add_u32 v6, {lds_base}, v6")
    a("s_waitcnt vmcnt(0)")
    X=24
    for d in range(12):
        a(f"v_lshlrev_b32 v{X+2*d}, 16, v{8+d}")
        a(f"v_and_b32 v{X+2*d+1}, 0xffff0000, v{8+d}")
    a(f"v_add_f32 v20, v{X}, v{X+1}")
    a(f"v_add_f32 v21, v{X+2}, v{X+3}")
    a(f"v_add_f32 v22, v{X+4}, v{X+5}")
    a(f"v_add_f32 v23, v{X+6}, v{X+7}")
    for i in range(8,24,4):
        for j in range(4): a(f"v_add_f32 v{20+j}, v{20+j}, v{X+i+j}")
    a("v_add_f32 v20, v20, v21"); a("v_add_f32 v22, v22, v23"); a("v_add_f32 v20, v20, v22")
    reduce32(a, 20, 21)
    a(f"v_mul_f32 v20, {1.0/640!r}, v20".replace(repr(1.0/640), "0x3acccccd"))
    a("v_mov_b32 v48, 0"); a("v_mov_b32 v49, 0")
    for i in range(16):
        a(f"v_sub_f32 v{50+(i%4)}, v{X+i}, v20")
        a(f"v_fmac_f32 v{48+(i%2)}, v{50+(i%4)}, v{50+(i%4)}")
    a("s_mov_b32 exec_lo, 0xffff"); a("s_mov_b32 exec_hi, 0xffff")
    for i in range(16,24):
        a(f"v_sub_f32 v{50+(i%4)}, v{X+i}, v20")
        a(f"v_fmac_f32 v{48+(i%2)}, v{50+(i%4)}, v{50+(i%4)}")
    a("s_mov_b64 exec, -1")
    a("v_add_f32 v48, v48, v49")
    reduce32(a, 48, 49)
    a("v_mul_f32 v48, 0x3acccccd, v48")
    bf16r(a, 20, 20)
    bf16r(a, 48, 48)
    a("v_add_f32 v48, 0x3727c5ac, v48")
    bf16r(a, 48, 48)
    a("v_sqrt_f32 v48, v48")
    bf16r(a, 48, 48)
    a("v_rcp_f32 v48, v48")
    for d in range(12):
        a(f"v_sub_f32 v50, v{X+2*d}, v20")
        a(f"v_sub_f32 v51, v{X+2*d+1}, v20")
        a(f"v_cvt_pk_bf16_f32 v52, v50, v51")
        a(f"v_lshlrev_b32 v50, 16, v52")
        a(f"v_and_b32 v51, 0xffff0000, v52")
        a(f"v_mul_f32 v50, v50, v48")
        a(f"v_mul_f32 v51, v51, v48")
        a(f"v_cvt_pk_bf16_f32 v{8+d}, v50, v51")
    a(f"buffer_store_dwordx4 v[8:11], v3, s[12:15], 0 offen {cflag}")
    a(f"buffer_store_dwordx4 v[12:15], v3, s[12:15], 0 offen offset:512 {cflag}")
    a(f"buffer_store_dwordx4 v[16:19], v4, s[12:15], 0 offen {cflag}")
    a("ds_write_b128 v6, v[8:11]")
    a("ds_write_b128 v6, v[12:15] offset:512")
    a("s_mov_b32 exec_lo, 0xffff"); a("s_mov_b32 exec_hi, 0xffff")
    a("ds_write_b128 v6, v[16:19] offset:1024")
    a("s_mov_b64 exec, -1")
    a("v_lshrrev_b32 v7, 4, v0")
    a("v_bfe_u32 v50, v0, 2, 2")
    a(f"v_mul_u32_u24 v50, {LN_PITCH}, v50")
    a("v_and_b32 v51, 3, v0")
    a("v_lshl_add_u32 v50, v51, 3, v50")
    a("v_lshl_add_u32 v50, v7, 5, v50")
    if lds_base: a(f"v_add_u32 v50, {lds_base}, v50")
    a("v_and_b32 v51, 15, v0")
    a("v_lshl_add_u32 v51, v7, 4, v51")
    a("v_lshlrev_b32 v51, 12, v51")
    a(f"s_lshl_b32 s20, s{swg}, 4")
    a("v_add_u32 v51, s20, v51")
    a("s_waitcnt lgkmcnt(0)")
    a("s_barrier")
    for it in range(3):
        r=24+4*it
        if it==2:
            a("v_readfirstlane_b32 s21, v7")
            a("s_cmp_ge_u32 s21, 8")
            a(f"s_cbranch_scc1 {pfx}_skip3")
        a(f"ds_read_b64_tr_b16 v[{r}:{r+1}], v50 offset:{it*512}")
        a(f"ds_read_b64_tr_b16 v[{r+2}:{r+3}], v50 offset:{it*512+4*LN_PITCH}")
        a("s_waitcnt lgkmcnt(0)")
        a(f"s_mov_b32 s22, {it*16*16*4096}")
        a(f"buffer_store_dwordx4 v[{r}:{r+3}], v51, s[16:19], s22 offen {cflag}")
    a.label(f"{pfx}_skip3")
```

```python
import sys
from common import *
from ln import role_ln
from conv import role_c
from gemm import role_g1, role_g2
HEADER = open('parallel_sum__ssm_conv_s4__glu_gated_swiglu__prompt.s.ref').read().split('; Override launch')[0]
def build(extra_empty=0):
    out = HEADER
    out += "; @launch kernel=prep_kernel grid=(256,1,1) block=(256,1,1) lds=10752\n"
    out += "; @launch kernel=mid_kernel grid=(512,1,1) block=(256,1,1) lds=81920\n"
    out += "; @launch kernel=fin_kernel grid=(256,1,1) block=(256,1,1) lds=81920\n"
    for i in range(extra_empty): out += "; @launch kernel=nop_kernel grid=(1,1,1) block=(64,1,1) lds=0\n"
    out += '.amdgcn_target "amdgcn-amd-amdhsa--gfx950"\n'
    a=Asm()
    a("s_cmp_ge_u32 s2, 256"); a("s_cbranch_scc1 prep_end")
    role_ln(a, 2, pfx="ln")
    a.label("prep_end"); a("s_endpgm")
    out += kernel_text("prep_kernel", a.text(), 64)
    a=Asm()
    a("s_cmp_ge_u32 s2, 512"); a("s_cbranch_scc1 mid_end")
    a("s_cmp_ge_u32 s2, 256"); a("s_cbranch_scc1 mid_c")
    role_g1(a, 2)
    a("s_branch mid_end")
    a.label("mid_c")
    a("s_sub_u32 s3, s2, 256")
    role_c(a, 3)
    a.label("mid_end"); a("s_endpgm")
    out += kernel_text("mid_kernel", a.text(), 256)
    a=Asm()
    a("s_cmp_ge_u32 s2, 256"); a("s_cbranch_scc1 fin_end")
    role_g2(a, 2)
    a.label("fin_end"); a("s_endpgm")
    out += kernel_text("fin_kernel", a.text(), 256)
    if extra_empty:
        a=Asm(); a("s_endpgm")
        out += kernel_text("nop_kernel", a.text(), 8)
    return out
if __name__=="__main__":
    path = sys.argv[1] if len(sys.argv)>1 else "v1.s"
    ee = int(sys.argv[2]) if len(sys.argv)>2 else 0
    open(path,"w").write(build(ee))
    print("wrote", path)
```

```python
from asmlib import *
T=2048; D=640; F=1536; NS=192
XBYTES=T*D*2
WS_XN  = 0x000000
WS_XNT = 0x280000
WS_YT  = 0x500000
WS_H   = 0x780000
WS_FLG = 0xE00000
KA = dict(x=0,Are=8,Aim=16,Bre=24,Bim=32,Cre=40,Cim=48,ldt=56,dsk=64,bx=72,w1=80,w3=88,w2=96,out=104,dbg=112,ws=120)

def srd(a, s, base, nbytes, off=0):
    a.unprotect(range(s,s+4))
    if off:
        a(f"s_add_u32 s{s}, s{base}, {off}")
        a(f"s_addc_u32 s{s+1}, s{base+1}, 0")
    else:
        a(f"s_mov_b32 s{s}, s{base}")
        a(f"s_mov_b32 s{s+1}, s{base+1}")
    a(f"s_mov_b32 s{s+2}, {nbytes}")
    a(f"s_mov_b32 s{s+3}, 0x00020000")
    a.protect(range(s,s+4))

def bf16r(a, dst, src):
    a(f"v_cvt_pk_bf16_f32 v{dst}, v{src}, v{src}")
    a(f"v_lshlrev_b32 v{dst}, 16, v{dst}")

def reduce32(a, v, t):
    a(f"v_add_f32_dpp v{v}, v{v}, v{v} quad_perm:[1,0,3,2] row_mask:0xf bank_mask:0xf")
    a(f"v_add_f32_dpp v{v}, v{v}, v{v} quad_perm:[2,3,0,1] row_mask:0xf bank_mask:0xf")
    a(f"v_add_f32_dpp v{v}, v{v}, v{v} row_half_mirror row_mask:0xf bank_mask:0xf")
    a(f"v_add_f32_dpp v{v}, v{v}, v{v} row_mirror row_mask:0xf bank_mask:0xf")
    a(f"v_mov_b32 v{t}, v{v}")
    a(f"v_permlane16_swap_b32 v{v}, v{t}")
    a(f"v_add_f32 v{v}, v{v}, v{t}")

def kernel_text(name, body, nvgpr, nagpr=0, nsgpr=96):
    ao = (nvgpr+3)//4*4
    nfv = ao+nagpr if nagpr else nvgpr
    return f""".text
.globl {name}
.p2align 8
.type {name},@function
{name}:
{body}
.section .rodata,"a"
.p2align 6
.amdhsa_kernel {name}
  .amdhsa_next_free_vgpr {nfv}
  .amdhsa_next_free_sgpr {nsgpr}
  .amdhsa_accum_offset {ao}
  .amdhsa_group_segment_fixed_size 0
  .amdhsa_kernarg_size 128
  .amdhsa_user_sgpr_count 2
  .amdhsa_user_sgpr_kernarg_segment_ptr 1
  .amdhsa_system_sgpr_workgroup_id_x 1
.end_amdhsa_kernel
"""

PROF=False
WS_TS=0xF00000
def ts(a, idx):
    if PROF: a(f"s_memrealtime s[{80+2*idx}:{81+2*idx}]")
def ts_flush(a, kid, swg, n, pfx):
    if not PROF: return
    a.unprotect()
    a("s_waitcnt lgkmcnt(0)")
    a(f"s_load_dwordx2 s[76:77], s[0:1], {KA['ws']}")
    a("s_waitcnt lgkmcnt(0)")
    a(f"s_add_u32 s72, s76, {WS_TS+kid*0x40000}")
    a("s_addc_u32 s73, s77, 0")
    a("s_mov_b32 s74, 0x40000")
    a("s_mov_b32 s75, 0x00020000")
    a("v_lshrrev_b32 v1, 6, v0")
    a(f"s_lshl_b32 s78, s{swg}, 3")
    a("v_add_u32 v1, s78, v1")
    a("v_lshlrev_b32 v1, 5, v1")
    a("v_and_b32 v2, 63, v0")
    a("v_cmp_eq_u32 vcc, 0, v2")
    a("s_and_saveexec_b64 s[78:79], vcc")
    a(f"s_cbranch_execz {pfx}_tsend")
    for i in range(n):
        a(f"v_mov_b32 v2, s{80+2*i}")
        a(f"buffer_store_dword v2, v1, s[72:75], 0 offen offset:{4*i}")
    a("s_waitcnt vmcnt(0)")
    a.label(f"{pfx}_tsend")
    a("s_mov_b64 exec, s[78:79]")

WS_ST  = 0xD80000
WS_FLN = 0xE00000
WS_FH  = 0xE01000
WS_FY  = 0xE02000
WS_FT  = 0xE00000
S_NONCE = 70
S_FLG = 72
SPIN_MAX = 1<<22

def flag_srd(a, s_ws):
    srd(a, S_FLG, s_ws, 0x3000, WS_FLN)

def nonce_publish(a, vt, s_tmp):
    a(f"s_load_dwordx2 s[{s_tmp}:{s_tmp+1}], s[0:1], {KA['dbg']}")
    a(f"s_memrealtime s[{s_tmp+2}:{s_tmp+3}]")
    a("s_waitcnt lgkmcnt(0)")
    a(f"s_or_b32 s{s_tmp+2}, s{s_tmp+2}, 1")
    a(f"v_mov_b32 v{vt}, s{s_tmp+2}")
    a(f"v_mov_b32 v{vt+1}, 0")
    a(f"global_store_dword v{vt+1}, v{vt}, s[{s_tmp}:{s_tmp+1}] sc1")

def nonce_get(a, vt, s_tmp, pfx, dst=None):
    a(f"s_load_dwordx2 s[{s_tmp}:{s_tmp+1}], s[0:1], {KA['dbg']}")
    a(f"v_mov_b32 v{vt+1}, 0")
    a(f"s_mov_b32 s{s_tmp+2}, {SPIN_MAX}")
    a("s_waitcnt lgkmcnt(0)")
    a.label(f"{pfx}_nl")
    a(f"global_load_dword v{vt}, v{vt+1}, s[{s_tmp}:{s_tmp+1}] sc1")
    a("s_waitcnt vmcnt(0)")
    dst = S_NONCE if dst is None else dst
    a(f"v_readfirstlane_b32 s{dst}, v{vt}")
    a(f"s_sub_u32 s{s_tmp+2}, s{s_tmp+2}, 1")
    a(f"s_cmp_eq_u32 s{s_tmp+2}, 0")
    a(f"s_cbranch_scc1 {pfx}_nd")
    a(f"s_cmp_eq_u32 s{dst}, 0")
    a(f"s_cbranch_scc0 {pfx}_nd")
    a("s_sleep 2")
    a(f"s_branch {pfx}_nl")
    a.label(f"{pfx}_nd")

def poll(a, voff, vt, soff, s_cnt, pfx, width=1):
    a(f"s_mov_b32 s{s_cnt}, {SPIN_MAX}")
    a(f"s_mov_b32 s{s_cnt+1}, {soff}")
    a.label(f"{pfx}_pl")
    op={1:"dword",2:"dwordx2",4:"dwordx4"}[width]
    a(f"buffer_load_{op} {vr(vt,width)}, v{voff}, s[{S_FLG}:{S_FLG+3}], s{s_cnt+1} offen sc1")
    a("s_waitcnt vmcnt(0)")
    for i in range(1,width):
        a(f"v_xor_b32 v{vt+i}, s{S_NONCE}, v{vt+i}")
    a(f"v_xor_b32 v{vt}, s{S_NONCE}, v{vt}")
    for i in range(1,width):
        a(f"v_or_b32 v{vt}, v{vt}, v{vt+i}")
    a(f"v_cmp_ne_u32 vcc, 0, v{vt}")
    a(f"s_sub_u32 s{s_cnt}, s{s_cnt}, 1")
    a(f"s_cmp_eq_u32 s{s_cnt}, 0")
    a(f"s_cbranch_scc1 {pfx}_pd")
    a("s_nop 1")
    a(f"s_cbranch_vccz {pfx}_pd")
    a("s_sleep 2")
    a(f"s_branch {pfx}_pl")
    a.label(f"{pfx}_pd")

def flag_set(a, vt, s_off, pfx):
    a(f"v_mov_b32 v{vt}, s{S_NONCE}")
    a(f"v_mov_b32 v{vt+1}, 0")
    a("s_mov_b64 exec, 1")
    a(f"buffer_store_dword v{vt}, v{vt+1}, s[{S_FLG}:{S_FLG+3}], s{s_off} offen sc1")
    a("s_mov_b64 exec, -1")
```

```python
from common import *
CS=4288
KREG=4*CS
UREG=47*128
WREG=KREG+UREG
LOG2E=0x3fb8aa3b
INV2PI=0x3e22f983

class CPool:
    def __init__(self, base, n): self.free=[base+2*i for i in range(n)]
    def get(self): return self.free.pop(0)
    def put(self,r): self.free.insert(0,r)

def cmul(a, d, x, y, pk=True, tmp=None):
    if pk:
        a(f"v_pk_mul_f32 v[{d}:{d+1}], v[{x}:{x+1}], v[{y}:{y+1}] op_sel:[0,0] op_sel_hi:[0,1]")
        a(f"v_pk_fma_f32 v[{d}:{d+1}], v[{x}:{x+1}], v[{y}:{y+1}], v[{d}:{d+1}] op_sel:[1,1,0] op_sel_hi:[1,0,1] neg_lo:[1,0,0]")
    else:
        a(f"v_mul_f32 v{d}, v{x}, v{y}")
        a(f"v_mul_f32 v{d+1}, v{x}, v{y+1}")
        a(f"v_fma_f32 v{d}, -v{x+1}, v{y+1}, v{d}")
        a(f"v_fmac_f32 v{d+1}, v{x+1}, v{y}")

def cmul2(a, jobs, pk=True):
    if pk:
        for d,x,y in jobs:
            a(f"v_pk_mul_f32 v[{d}:{d+1}], v[{x}:{x+1}], v[{y}:{y+1}] op_sel:[0,0] op_sel_hi:[0,1]")
        for d,x,y in jobs:
            a(f"v_pk_fma_f32 v[{d}:{d+1}], v[{x}:{x+1}], v[{y}:{y+1}], v[{d}:{d+1}] op_sel:[1,1,0] op_sel_hi:[1,0,1] neg_lo:[1,0,0]")
    else:
        for d,x,y in jobs:
            a(f"v_mul_f32 v{d}, v{x}, v{y}"); a(f"v_mul_f32 v{d+1}, v{x}, v{y+1}")
        for d,x,y in jobs:
            a(f"v_fma_f32 v{d}, -v{x+1}, v{y+1}, v{d}"); a(f"v_fmac_f32 v{d+1}, v{x+1}, v{y}")

def cexp(a, d, zr, zi, scale, t):
    if scale is None:
        a(f"v_exp_f32 v{t}, v{zr}")
        a(f"v_fract_f32 v{t+1}, v{zi}")
    else:
        a(f"v_mul_f32 v{t}, {scale}, v{zr}")
        a(f"v_mul_f32 v{t+1}, {scale}, v{zi}")
        a(f"v_exp_f32 v{t}, v{t}")
        a(f"v_fract_f32 v{t+1}, v{t+1}")
    a(f"v_cos_f32 v{d}, v{t+1}")
    a(f"v_sin_f32 v{d+1}, v{t+1}")
    a(f"v_mul_f32 v{d}, v{d}, v{t}")
    a(f"v_mul_f32 v{d+1}, v{d+1}, v{t}")

V_LANE=1; V_PAR=8
V_DT=26
V_ZR=28; V_ZI=29; V_CB=30
V_E1=32; V_E2=34; V_E4=36; V_E8=38; V_E16=40; V_E256=42
V_T=44
V_POOL=48
V_PK=80
V_FA=88
V_KACC=104
V_SW=120; V_SWX=121; V_TR0=122; V_TR1=123
V_X=124
V_ACC=112+24
V_A=168
V_B=200
V_BA=232
V_AA=248

def c_load_params(a, s_ch, keep=None):
    names=["Are","Aim","Bre","Bim","Cre","Cim"]
    for i,n in enumerate(names): a(f"s_load_dwordx2 s[{4+2*i}:{5+2*i}], s[0:1], {KA[n]}")
    a(f"s_load_dwordx2 s[16:17], s[0:1], {KA['ldt']}")
    a(f"s_load_dwordx2 s[18:19], s[0:1], {KA['ws']}")
    a(f"v_and_b32 v{V_LANE}, 63, v0")
    a("s_waitcnt lgkmcnt(0)")
    if keep:
        a("s_mov_b32 s68, s20"); a("s_mov_b32 s69, s21")
        a("s_mov_b32 s96, s22"); a("s_mov_b32 s97, s23")
    for i in range(6): srd(a, 24+4*i, 4+2*i, D*NS*2)
    srd(a, 48, 16, D*2)
    srd(a, 52, 18, XBYTES, WS_XNT)
    srd(a, 56, 18, XBYTES, WS_YT)
    a(f"s_mul_i32 s20, s{s_ch}, {NS*2}")
    a(f"v_lshlrev_b32 v2, 1, v{V_LANE}")
    a(f"s_lshl_b32 s21, s{s_ch}, 1")
    a(f"v_mov_b32 v3, s21")
    a(f"buffer_load_ushort v{V_DT}, v3, s[48:51], 0 offen")
    for c in range(3):
        for i in range(6):
            a(f"buffer_load_ushort v{V_PAR+6*c+i}, v2, s[{24+4*i}:{27+4*i}], s20 offen offset:{128*c}")

def c_init_lds(a, s_wb):
    a(f"v_mov_b32 v{V_X}, 0"); a(f"v_mov_b32 v{V_X+1}, 0"); a(f"v_mov_b32 v{V_X+2}, 0"); a(f"v_mov_b32 v{V_X+3}, 0")
    a(f"v_lshlrev_b32 v{V_X+4}, 4, v{V_LANE}")
    a(f"v_add_u32 v{V_X+4}, s{s_wb}, v{V_X+4}")
    a(f"ds_write_b128 v{V_X+4}, v[{V_X}:{V_X+3}] offset:{KREG}")
    a(f"ds_write_b128 v{V_X+4}, v[{V_X}:{V_X+3}] offset:{KREG+1024}")

def c_dma_u(a, s_ch, s_wb, flags=""):
    L=V_LANE; t=V_X+4
    a(f"v_lshrrev_b32 v{t}, 3, v{L}")
    a(f"v_add_u32 v{t+1}, 7, v{t}")
    a(f"v_and_b32 v{t+1}, 7, v{t+1}")
    a(f"v_and_b32 v{t+2}, 7, v{L}")
    a(f"v_xor_b32 v{t+1}, v{t+1}, v{t+2}")
    a(f"v_lshlrev_b32 v{t}, 7, v{t}")
    a(f"v_lshl_add_u32 v{t}, v{t+1}, 4, v{t}")
    a(f"s_lshl_b32 s20, s{s_ch}, 12")
    a(f"s_add_u32 s21, s{s_wb}, {KREG+15*128}")
    a(f"s_mov_b32 m0, s21")
    for k in range(4):
        a(f"buffer_load_dwordx4 v{t}, s[52:55], s20 offen offset:{1024*k} {flags} lds")

def kgen(a, s_wb, pk=True, wait_params=True, after_chunk0=None):
    L=V_LANE
    if wait_params: a("s_waitcnt vmcnt(18)")
    a(f"v_lshlrev_b32 v{V_DT}, 16, v{V_DT}")
    a(f"v_mul_f32 v{V_DT}, {LOG2E:#x}, v{V_DT}")
    a(f"v_exp_f32 v{V_DT}, v{V_DT}")
    bf16r(a, V_DT, V_DT)
    a(f"v_and_b32 v{V_T}, 7, v{L}")
    a(f"v_lshlrev_b32 v{V_SW}, 7, v{L}")
    a(f"v_lshl_add_u32 v{V_SW}, v{V_T}, 4, v{V_SW}")
    a(f"v_add_u32 v{V_SW}, s{s_wb}, v{V_SW}")
    t=V_T
    for j in range(2):
        a(f"v_lshrrev_b32 v{t}, 5, v{L}")
        a(f"v_lshlrev_b32 v{t}, 2, v{t}")
        a(f"v_bfe_u32 v{t+1}, v{L}, 3, 1")
        a(f"v_add_u32 v{t}, v{t}, v{t+1}")
        if j: a(f"v_add_u32 v{t}, 2, v{t}")
        a(f"v_bfe_u32 v{t+1}, v{L}, 2, 1")
        a(f"v_lshlrev_b32 v{t+1}, 2, v{t+1}")
        a(f"v_bfe_u32 v{t+2}, v{L}, 4, 1")
        a(f"v_lshl_add_u32 v{t+1}, v{t+2}, 1, v{t+1}")
        a(f"v_bfe_u32 v{t+2}, v{L}, 1, 1")
        a(f"v_add_u32 v{t+1}, v{t+1}, v{t+2}")
        a(f"v_xor_b32 v{t+1}, v{t+1}, v{t}")
        a(f"v_lshlrev_b32 v{t+1}, 4, v{t+1}")
        a(f"v_lshl_add_u32 v{t+1}, v{t}, 7, v{t+1}")
        a(f"v_and_b32 v{t+2}, 1, v{L}")
        a(f"v_lshl_add_u32 v{t+1}, v{t+2}, 3, v{t+1}")
        a(f"v_add_u32 v{V_TR0+j}, s{s_wb}, v{t+1}")
    for r in range(16): a(f"v_mov_b32 v{V_KACC+r}, 0")
    def emit_group(vals, side, q, negim):
        vals=[v if v is not None else vals[0] for v in vals]
        for k in range(4): a(f"v_cvt_pk_bf16_f32 v{V_PK+k}, v{vals[2*k]}, v{vals[2*k+1]}")
        s="-" if negim else ""
        for k in range(4): a(f"v_cvt_pk_bf16_f32 v{V_PK+4+k}, {s}v{vals[2*k]+1}, {s}v{vals[2*k+1]+1}")
        a(f"v_xor_b32 v{V_SWX}, {q<<4}, v{V_SW}")
        a(f"ds_write_b128 v{V_SWX}, v[{V_PK}:{V_PK+3}] offset:{side*8192}")
        a(f"v_xor_b32 v{V_SWX}, {(4+q)<<4}, v{V_SW}")
        a(f"ds_write_b128 v{V_SWX}, v[{V_PK+4}:{V_PK+7}] offset:{side*8192}")
    for c in range(3):
        P=V_PAR+6*c
        if wait_params: a(f"s_waitcnt vmcnt({12-6*c})")
        for i in range(6): a(f"v_lshlrev_b32 v{P+i}, 16, v{P+i}")
        a(f"v_mul_f32 v{V_ZR}, v{V_DT}, v{P}")
        a(f"v_mul_f32 v{V_ZI}, v{V_DT}, v{P+1}")
        a(f"v_mul_f32 v{P+2}, v{V_DT}, v{P+2}")
        a(f"v_mul_f32 v{P+3}, v{V_DT}, v{P+3}")
        a(f"v_mul_f32 v{V_ZR}, {LOG2E:#x}, v{V_ZR}")
        a(f"v_mul_f32 v{V_ZI}, {INV2PI:#x}, v{V_ZI}")
        cmul(a, V_CB, P+4, P+2, pk=False)
        cexp(a, V_E1, V_ZR, V_ZI, None, V_T)
        cexp(a, V_E8, V_ZR, V_ZI, "0x41000000", V_T)
        cexp(a, V_E256, V_ZR, V_ZI, "0x43800000", V_T)
        cmul2(a, [(V_E2,V_E1,V_E1),(V_E16,V_E8,V_E8)], pk)
        cmul(a, V_E4, V_E2, V_E2, pk)
        pool=CPool(V_POOL,16)
        g=pool.get
        W=[None]*8; W[0]=V_CB
        W[1]=g(); V256=g(); cmul2(a,[(W[1],W[0],V_E1),(V256,V_CB,V_E256)],pk)
        W[2]=g(); W[3]=g(); V258=g(); cmul2(a,[(W[2],W[0],V_E2),(W[3],W[1],V_E2),(V258,V256,V_E2)],pk)
        V260=g(); W[4]=g(); W[5]=g(); cmul2(a,[(V260,V258,V_E2),(W[4],W[2],V_E2),(W[5],W[3],V_E2)],pk)
        emit_group([W[0],W[1],W[2],W[3],V256,V256,V258,V260],0,0,True)
        for r in (W[1],W[2],W[3],V258): pool.put(r)
        W[6]=g(); W[7]=g(); V262=g(); V512=g()
        cmul2(a,[(W[6],W[4],V_E2),(W[7],W[5],V_E2),(V262,V260,V_E2),(V512,V256,V_E256)],pk)
        pool.put(V256)
        V264=g(); V516=g(); V768=g(); cmul2(a,[(V264,V262,V_E2),(V516,V512,V_E4),(V768,V512,V_E256)],pk)
        emit_group([W[4],W[5],W[6],W[7],V260,V260,V262,V264],0,1,True)
        for r in (W[4],W[5],W[6],W[7],V260,V262,V264): pool.put(r)
        V520=g(); V772=g(); V1024=g(); cmul2(a,[(V520,V516,V_E4),(V772,V768,V_E4),(V1024,V768,V_E256)],pk)
        V776=g(); V1280=g(); V1032=g(); cmul2(a,[(V776,V772,V_E4),(V1280,V1024,V_E256),(V1032,V1024,V_E8)],pk)
        V1536=g(); V1288=g(); cmul2(a,[(V1536,V1280,V_E256),(V1288,V1280,V_E8)],pk)
        emit_group([V512,V516,V520,V1024,V768,V772,V776,V1536],0,2,True)
        for r in (V512,V516,V520,V1024,V768,V772,V776): pool.put(r)
        V1544=g(); V1792=g(); cmul2(a,[(V1544,V1536,V_E8),(V1792,V1536,V_E256)],pk)
        V1800=g(); cmul(a,V1800,V1792,V_E8,pk)
        emit_group([V1032,V1280,V1288,None,V1544,V1792,V1800,None],0,3,True)
        G=[V_POOL+2*i for i in range(8)]
        H=[V_POOL+16+2*i for i in range(8)]
        a(f"v_mov_b32 v{G[0]}, 1.0"); a(f"v_mov_b32 v{G[0]+1}, 0")
        a(f"v_mov_b32 v{G[1]}, v{V_E8}"); a(f"v_mov_b32 v{G[1]+1}, v{V_E8+1}")
        prev=None
        cur,oth=G,H
        for q in range(4):
            if q>0:
                cmul2(a,[(cur[0],oth[6],V_E16),(cur[1],oth[7],V_E16)],pk)
            for i in range(2,8,2):
                cmul2(a,[(cur[i],cur[i-2],V_E16),(cur[i+1],cur[i-1],V_E16)],pk)
            emit_group(cur,1,q,False)
            cur,oth=oth,cur
        a("s_waitcnt lgkmcnt(0)")
        def rd(s):
            b=V_A+8*s
            a(f"ds_read_b64_tr_b16 v[{b}:{b+1}], v{V_TR0} offset:{s*1024}")
            a(f"ds_read_b64_tr_b16 v[{b+2}:{b+3}], v{V_TR1} offset:{s*1024}")
            a(f"ds_read_b64_tr_b16 v[{b+4}:{b+5}], v{V_TR0} offset:{s*1024+8192}")
            a(f"ds_read_b64_tr_b16 v[{b+6}:{b+7}], v{V_TR1} offset:{s*1024+8192}")
        rd(0); rd(1); rd(2)
        for s in range(8):
            left=min(7,s+2)-s
            a(f"s_waitcnt lgkmcnt({4*left})")
            if s+3<8: rd(s+3)
            b=V_A+8*s
            a(f"v_mfma_f32_32x32x16_bf16 v[{V_KACC}:{V_KACC+15}], v[{b}:{b+3}], v[{b+4}:{b+7}], v[{V_KACC}:{V_KACC+15}]")
        if c==0 and after_chunk0: after_chunk0()
    K=V_KACC; P=V_POOL
    t=V_T
    a(f"v_and_b32 v{t}, 31, v{L}")
    a(f"v_lshrrev_b32 v{t+1}, 5, v{L}")
    a(f"v_lshlrev_b32 v{t}, 4, v{t}")
    a(f"v_sub_u32 v{t}, {4080-1024}, v{t}")
    a(f"v_add_u32 v{t}, s{s_wb}, v{t}")
    a(f"v_lshlrev_b32 v{t+2}, 9, v{t+1}")
    a(f"v_sub_u32 v{V_X}, v{t}, v{t+2}")
    a(f"v_sub_u32 v{V_X+1}, v{V_X}, v{t+2}")
    a(f"v_subrev_u32 v{V_X+1}, {2560-1024}, v{V_X+1}")
    a(f"v_and_b32 v{t}, 1, v{L}")
    a(f"v_cmp_eq_u32 vcc, 1, v{t}")
    a(f"v_cndmask_b32 v{t+2}, v{K+11}, v{K+12}, vcc")
    a(f"v_cndmask_b32 v{t+3}, v{K+13}, v{K+14}, vcc")
    for k in range(4): a(f"v_cvt_pk_bf16_f32 v{P+k}, v{K+7-2*k}, v{K+6-2*k}")
    a(f"ds_write_b128 v{V_X}, v[{P}:{P+3}] offset:1024")
    e0,e1,e2=K+8,K+9,K+10
    for k,(x,y) in enumerate([(e2,e2),(e1,e1),(e1,e0),(e0,e0)]): a(f"v_cvt_pk_bf16_f32 v{P+4+k}, v{x}, v{y}")
    a(f"ds_write_b128 v{V_X}, v[{P+4}:{P+7}]")
    for k,(x,y) in enumerate([(K+12,K+12),(K+12,t+2),(K+11,K+11),(K+11,K+11)]): a(f"v_cvt_pk_bf16_f32 v{P+8+k}, v{x}, v{y}")
    a(f"ds_write_b128 v{V_X+1}, v[{P+8}:{P+11}] offset:512")
    for k,(x,y) in enumerate([(K+14,K+14),(K+14,t+3),(K+13,K+13),(K+13,K+13)]): a(f"v_cvt_pk_bf16_f32 v{P+12+k}, v{x}, v{y}")
    a(f"ds_write_b128 v{V_X+1}, v[{P+12}:{P+15}]")
    a(f"v_bfe_u32 v{t}, v{L}, 3, 2")
    a(f"v_mul_u32_u24 v{t}, {CS}, v{t}")
    a(f"v_and_b32 v{t+1}, 7, v{L}")
    a(f"v_lshl_add_u32 v{t}, v{t+1}, 4, v{t}")
    a(f"v_add_u32 v{t}, s{s_wb}, v{t}")
    for k in range(4): a(f"v_mov_b32 v{P+16+k}, 0")
    a(f"ds_write_b128 v{t}, v[{P+16}:{P+19}] offset:4096")
    a(f"v_lshlrev_b32 v{t}, 4, v{L}")
    a(f"v_add_u32 v{t}, s{s_wb}, v{t}")
    a("s_waitcnt lgkmcnt(0)")
    for k in range(4):
        Dk=P+8*(k&1)
        a(f"ds_read_b128 v[{Dk}:{Dk+3}], v{t} offset:{1024*k}")
        a(f"ds_read_b64 v[{Dk+4}:{Dk+5}], v{t} offset:{1024*k+16}")
        a("s_waitcnt lgkmcnt(0)")
        O=P+16
        for i in range(4): a(f"v_alignbit_b32 v{O+i}, v{Dk+i+1}, v{Dk+i}, 16")
        for i in range(4): a(f"v_mov_b32 v{O+4+i}, v{Dk+i+1}")
        for i in range(4): a(f"v_alignbit_b32 v{O+8+i}, v{Dk+i+2}, v{Dk+i+1}, 16")
        a(f"ds_write_b128 v{t}, v[{O}:{O+3}] offset:{1024*k+CS}")
        a(f"ds_write_b128 v{t}, v[{O+4}:{O+7}] offset:{1024*k+2*CS}")
        a(f"ds_write_b128 v{t}, v[{O+8}:{O+11}] offset:{1024*k+3*CS}")

def conv(a, s_ch, s_wb, cflag=""):
    L=V_LANE; t=V_T
    a(f"v_and_b32 v{t}, 15, v{L}")
    a(f"v_sub_u32 v{t+1}, 3, v{t}")
    a(f"v_and_b32 v{t+1}, 3, v{t+1}")
    a(f"v_mul_u32_u24 v{t+1}, {CS}, v{t+1}")
    a(f"v_and_b32 v{t+2}, 12, v{t}")
    a(f"v_lshlrev_b32 v{t+2}, 1, v{t+2}")
    a(f"v_sub_u32 v{t+1}, v{t+1}, v{t+2}")
    a(f"v_lshrrev_b32 v{t+3}, 4, v{L}")
    a(f"v_lshl_add_u32 v{t+1}, v{t+3}, 4, v{t+1}")
    a(f"v_add_u32 v{t+1}, {2*2044-32*127}, v{t+1}")
    a(f"v_add_u32 v{V_AA}, s{s_wb}, v{t+1}")
    a(f"s_add_u32 s22, s{s_wb}, {KREG}")
    a(f"v_lshlrev_b32 v{t+1}, 7, v{t}")
    a(f"v_add_u32 v{t+1}, s22, v{t+1}")
    for rho in range(8):
        a(f"v_add_u32 v{t+2}, {15-rho}, v{t}")
        a(f"v_and_b32 v{t+2}, 7, v{t+2}")
        a(f"v_xor_b32 v{t+2}, v{t+2}, v{t+3}")
        a(f"v_lshl_add_u32 v{V_BA+2*rho}, v{t+2}, 4, v{t+1}")
        a(f"v_xor_b32 v{V_BA+2*rho+1}, 64, v{V_BA+2*rho}")
    for r in range(32): a(f"v_mov_b32 v{V_ACC+r}, 0")
    def aslot(x): return V_A+4*(x%8)
    def rdA(x):
        off=32*(x+127)
        s=aslot(x)
        a(f"ds_read_b64 v[{s}:{s+1}], v{V_AA} offset:{off}")
        a(f"ds_read_b64 v[{s+2}:{s+3}], v{V_AA} offset:{off+8}")
    def bslot(sg,n): return V_B+8*(sg%4)+4*n
    def rdB(sg):
        tau=sg//2; u4=1 if sg%2==0 else 0
        cnt=0
        for n in range(2):
            if n==0 and sg>=32: continue
            off=128*(15-tau)+2048*n
            s=bslot(sg,n)
            a(f"ds_read_b128 v[{s}:{s+3}], v{V_BA+2*(tau%8)+u4} offset:{off}")
            cnt+=1
        return cnt
    def rd(sg):
        c=0
        if sg==0:
            for x in (2,1,0,-1): rdA(x); c+=2
        else:
            for x in (-2*sg,-2*sg-1): rdA(x); c+=2
        c+=rdB(sg)
        return c
    a("s_waitcnt vmcnt(0) lgkmcnt(0)")
    n0=rd(0); n1=rd(1)
    cnt={0:n0,1:n1}
    for sg in range(64):
        nxt=cnt.get(sg+1,0)
        a(f"s_waitcnt lgkmcnt({nxt})")
        if sg+2<64: cnt[sg+2]=rd(sg+2)
        for n in (1,0):
            if n==0 and sg>=32: continue
            for m in range(4):
                acc=V_ACC+4*(2*m+n)
                A=aslot(2-2*sg-m); B=bslot(sg,n)
                a(f"v_mfma_f32_16x16x32_bf16 v[{acc}:{acc+3}], v[{A}:{A+3}], v[{B}:{B+3}], v[{acc}:{acc+3}]")
    a(f"v_and_b32 v{t}, 15, v{L}")
    a(f"v_lshrrev_b32 v{t+1}, 4, v{L}")
    a(f"v_lshrrev_b32 v{t+2}, 1, v{t+1}")
    a(f"v_and_b32 v{t+3}, 7, v{t}")
    a(f"v_xor_b32 v{t+2}, v{t+2}, v{t+3}")
    a(f"v_lshlrev_b32 v{t+2}, 4, v{t+2}")
    a(f"v_lshl_add_u32 v{t+2}, v{t}, 7, v{t+2}")
    a(f"v_and_b32 v{t+1}, 1, v{t+1}")
    a(f"v_lshl_add_u32 v{t+2}, v{t+1}, 3, v{t+2}")
    a(f"v_add_u32 v{V_X}, s{s_wb}, v{t+2}")
    for m in range(4):
        a(f"v_xor_b32 v{V_X+1}, {32*m}, v{V_X}")
        for n in range(2):
            acc=V_ACC+4*(2*m+n); p=V_POOL+2*(2*m+n)
            a(f"v_cvt_pk_bf16_f32 v{p}, v{acc}, v{acc+1}")
            a(f"v_cvt_pk_bf16_f32 v{p+1}, v{acc+2}, v{acc+3}")
            a(f"ds_write_b64 v{V_X+1}, v[{p}:{p+1}] offset:{2048*n}")
    a(f"v_lshrrev_b32 v{t}, 3, v{L}")
    a(f"v_and_b32 v{t+1}, 7, v{L}")
    a(f"v_xor_b32 v{t+1}, v{t+1}, v{t}")
    a(f"v_lshlrev_b32 v{t+1}, 4, v{t+1}")
    a(f"v_lshl_add_u32 v{t+1}, v{t}, 7, v{t+1}")
    a(f"v_add_u32 v{t+1}, s{s_wb}, v{t+1}")
    a(f"v_lshlrev_b32 v{t+2}, 4, v{L}")
    a(f"s_lshl_b32 s20, s{s_ch}, 12")
    a("s_waitcnt lgkmcnt(0)")
    for k in range(4): a(f"ds_read_b128 v[{V_A+4*k}:{V_A+4*k+3}], v{t+1} offset:{1024*k}")
    for k in range(4):
        a(f"s_waitcnt lgkmcnt({3-k})")
        a(f"buffer_store_dwordx4 v[{V_A+4*k}:{V_A+4*k+3}], v{t+2}, s[56:59], s20 offen offset:{1024*k} {cflag}")

def role_c(a, swg, pfx="c", pk=True, cflag="", lflag=""):
    a("v_lshrrev_b32 v2, 6, v0")
    a(f"s_lshr_b32 s60, s{swg}, 1")
    a("v_readfirstlane_b32 s61, v2")
    a("s_mul_i32 s60, s60, 5")
    a(f"s_and_b32 s62, s{swg}, 1")
    a("s_mul_i32 s63, s62, 3")
    a("s_add_u32 s60, s60, s63")
    a("s_add_u32 s60, s60, s61")
    a("s_sub_u32 s62, 3, s62")
    a("s_cmp_ge_u32 s61, s62")
    a(f"s_cbranch_scc1 {pfx}_end")
    a(f"s_mul_i32 s64, s61, {WREG}")
    c_load_params(a, 60)
    c_init_lds(a, 64)
    a("s_waitcnt lgkmcnt(0)")
    ts(a,1)
    kgen(a, 64, pk)
    ts(a,2)
    c_dma_u(a, 60, 64, lflag)
    conv(a, 60, 64, cflag)
    a.label(f"{pfx}_end")


from lwave import lwave
def role_c2(a, swg, pfx="c", pk=True, pf=True, lonly=False):
    a("v_lshrrev_b32 v2, 6, v0")
    a(f"s_and_b32 s65, s{swg}, 7")
    a("v_readfirstlane_b32 s61, v2")
    a(f"s_lshr_b32 s66, s{swg}, 3")
    a("s_mul_i32 s60, s65, 80")
    a("s_lshr_b32 s63, s66, 1")
    a("s_mul_i32 s63, s63, 5")
    a("s_add_u32 s60, s60, s63")
    a("s_and_b32 s62, s66, 1")
    a("s_mul_i32 s63, s62, 3")
    a("s_add_u32 s60, s60, s63")
    a("s_add_u32 s60, s60, s61")
    a("s_sub_u32 s62, 3, s62")
    a("s_cmp_eq_u32 s61, 3")
    a(f"s_cbranch_scc0 {pfx}_cw")
    lwave(a, swg, 3*WREG, pfx+"L", pf)
    a(f"s_branch {pfx}_end")
    a.label(f"{pfx}_cw")
    a.unprotect()
    if lonly:
        a(f"s_load_dwordx2 s[18:19], s[0:1], {KA['ws']}")
        a("v_and_b32 v1, 63, v0")
        a("s_waitcnt lgkmcnt(0)")
        flag_srd(a, 18)
        nonce_get(a, V_X, 20, pfx+"_nx")
        a("s_min_u32 s60, s60, 639")
        a("s_lshl_b32 s20, s60, 2")
        a(f"s_add_u32 s20, s20, {WS_FY-WS_FLN}")
        flag_set(a, V_X, 20, pfx+"x")
        a(f"s_branch {pfx}_end")
    a("s_cmp_ge_u32 s61, s62")
    a(f"s_cbranch_scc1 {pfx}_end")
    a(f"s_mul_i32 s64, s61, {WREG}")
    c_load_params(a, 60)
    flag_srd(a, 18)
    c_init_lds(a, 64)
    ts(a,1)
    kgen(a, 64, pk, wait_params=True)
    ts(a,2)
    nonce_get(a, V_X, 20, pfx+"_n1")
    a(f"v_and_b32 v{V_X+8}, 31, v{V_LANE}")
    a("s_lshl_b32 s22, s65, 5")
    a(f"v_add_u32 v{V_X+8}, s22, v{V_X+8}")
    a(f"v_lshlrev_b32 v{V_X+8}, 2, v{V_X+8}")
    poll(a, V_X+8, V_X, 0, 20, pfx+"_pl")
    ts(a,3)
    c_dma_u(a, 60, 64, "sc1")
    conv(a, 60, 64, "sc1")
    ts(a,4)
    a("s_waitcnt vmcnt(0)")
    a("s_lshl_b32 s20, s60, 2")
    a(f"s_add_u32 s20, s20, {WS_FY-WS_FLN}")
    flag_set(a, V_X, 20, pfx)
    a.label(f"{pfx}_end")
```

```python
from common import *
NLOG2E=0xbfb8aa3b
G1_STAGE=20480
def g1_map(a, sgi, s_rt, s_fc):
    a(f"s_and_b32 s20, s{sgi}, 7")
    a(f"s_lshr_b32 s21, s{sgi}, 3")
    a(f"s_lshr_b32 s22, s20, 1")
    a(f"s_lshl_b32 s22, s22, 2")
    a(f"s_and_b32 s23, s21, 3")
    a(f"s_add_u32 s{s_rt}, s22, s23")
    a(f"s_and_b32 s22, s20, 1")
    a(f"s_lshl_b32 s22, s22, 3")
    a(f"s_lshr_b32 s23, s21, 2")
    a(f"s_add_u32 s{s_fc}, s22, s23")

def role_g1(a, sgi, pfx="g1", aflag="", cflag="", a_src="xn", exact=True):
    S_RT,S_FC=60,61; S_W=62
    ACC=64
    FA=160
    VX=2; VW=3
    VRX=6; VRW=8
    g1_map(a, sgi, S_RT, S_FC)
    a(f"s_load_dwordx2 s[4:5], s[0:1], {KA['ws']}")
    a(f"s_load_dwordx2 s[6:7], s[0:1], {KA['w1']}")
    a(f"s_load_dwordx2 s[8:9], s[0:1], {KA['w3']}")
    a("v_lshrrev_b32 v12, 6, v0")
    a("v_and_b32 v1, 63, v0")
    a(f"v_readfirstlane_b32 s{S_W}, v12")
    a("s_waitcnt lgkmcnt(0)")
    srd(a, 24, 4, XBYTES, WS_XN)
    srd(a, 36, 4, T*F*2, WS_H)
    a(f"s_cmp_ge_u32 s{S_W}, 2")
    a("s_cselect_b32 s28, s8, s6")
    a("s_cselect_b32 s29, s9, s7")
    a(f"s_mov_b32 s30, {D*F*2}")
    a("s_mov_b32 s31, 0x00020000")
    a.protect(range(28,32))
    a("v_lshrrev_b32 v13, 2, v1")
    a("v_lshrrev_b32 v14, 3, v13")
    a("v_and_b32 v15, 3, v1")
    a("v_xor_b32 v16, v15, v14")
    a("v_xor_b32 v17, 2, v16")
    a(f"s_lshl_b32 s20, s{S_RT}, 7")
    a(f"s_lshl_b32 s21, s{S_W}, 5")
    a("s_add_u32 s20, s20, s21")
    a("v_add_u32 v13, s20, v13")
    a("v_mul_u32_u24 v13, 1280, v13")
    a(f"v_lshl_add_u32 v{VX}, v16, 4, v13")
    a(f"v_lshl_add_u32 v11, v17, 4, v13")
    a(f"v_add_u32 v11, {16*1280}, v11")
    a(f"s_and_b32 s21, s{S_W}, 1")
    a("s_mul_i32 s21, s21, 192")
    a(f"s_lshr_b32 s22, s{S_W}, 1")
    a("s_lshl_b32 s22, s22, 1")
    a(f"s_mul_i32 s23, s{S_FC}, 192")
    a("s_mov_b32 s33, 0x15555556")
    for i in range(3):
        a(f"v_add_u32 v13, s21, v1")
        if i: a(f"v_add_u32 v13, {64*i}, v13")
        a("v_mul_hi_u32 v14, v13, s33")
        a("v_mul_u32_u24 v15, 12, v14")
        a("v_sub_u32 v15, v13, v15")
        a("v_xor_b32 v15, s22, v15")
        a("v_mul_u32_u24 v14, 3072, v14")
        a("v_lshl_add_u32 v14, v15, 4, v14")
        a(f"v_add_u32 v{VW+i}, s23, v14")
    a(f"s_lshl_b32 s40, s{S_W}, 11")
    a(f"s_lshr_b32 s41, s{S_W}, 1")
    a("s_mul_i32 s41, s41, 6144")
    a(f"s_and_b32 s42, s{S_W}, 1")
    a("s_mul_i32 s42, s42, 3072")
    a("s_add_u32 s41, s41, s42")
    a("s_add_u32 s41, s41, 8192")
    a(f"s_lshr_b32 s43, s{S_W}, 1")
    a(f"s_and_b32 s44, s{S_W}, 1")
    a("v_and_b32 v13, 31, v1")
    a("v_lshrrev_b32 v14, 5, v1")
    a("v_lshrrev_b32 v15, 3, v13")
    a("v_xor_b32 v15, v15, v14")
    a("v_lshlrev_b32 v13, 6, v13")
    a("s_lshl_b32 s20, s43, 12")
    a("v_add_u32 v13, s20, v13")
    a(f"v_lshl_add_u32 v{VRX}, v15, 4, v13")
    a(f"v_xor_b32 v{VRX+1}, 32, v{VRX}")
    a("v_bfe_u32 v13, v1, 4, 1")
    a("v_bfe_u32 v15, v1, 2, 2")
    a("v_lshl_add_u32 v15, v14, 3, v15")
    a("v_mul_u32_u24 v15, 192, v15")
    a("v_mul_u32_u24 v16, 6144, v13")
    a("v_add_u32 v15, v15, v16")
    a("v_and_b32 v16, 3, v1")
    a("v_lshl_add_u32 v15, v16, 3, v15")
    a("v_add_u32 v15, 8192, v15")
    a("s_mul_i32 s20, s44, 3")
    for mt in range(3):
        a(f"s_add_u32 s21, s20, {mt}")
        a("v_xor_b32 v16, s21, v13")
        a(f"v_lshl_add_u32 v{VRW+mt}, v16, 5, v15")
    for r in range(96): a(f"v_mov_b32 v{ACC+r}, 0")
    def dma(stage, slot, k):
        base=slot*G1_STAGE
        if k<2:
            a(f"s_add_u32 m0, s40, {base+1024*k}")
            a(f"buffer_load_dwordx4 v{VX if k==0 else 11}, s[24:27], s45 offen {aflag} lds")
        else:
            a(f"s_add_u32 m0, s41, {base+1024*(k-2)}")
            a(f"buffer_load_dwordx4 v{VW+k-2}, s[28:31], s46 offen lds")
    def setk(stage):
        a(f"s_mov_b32 s45, {stage*64}")
        a(f"s_mov_b32 s46, {stage*32*3072}")
    def advk():
        a("s_add_u32 s45, s45, 64")
        a(f"s_add_u32 s46, s46, {32*3072}")
    def fr(set_): return FA+20*set_
    def reads(slot, kk, set_):
        b=fr(set_); base=slot*G1_STAGE
        for nt in range(2):
            a(f"ds_read_b128 v[{b+4*nt}:{b+4*nt+3}], v{VRX+kk} offset:{base+nt*2048}")
        for mt in range(3):
            for j in range(2):
                r=b+8+4*mt+2*j
                a(f"ds_read_b64_tr_b16 v[{r}:{r+1}], v{VRW+mt} offset:{base+kk*16*192+j*4*192}")
    def mf(set_, i):
        b=fr(set_); mt,nt=i//2,i%2
        acc=ACC+16*(2*mt+nt)
        a(f"v_mfma_f32_32x32x16_bf16 v[{acc}:{acc+15}], v[{b+8+4*mt}:{b+8+4*mt+3}], v[{b+4*nt}:{b+4*nt+3}], v[{acc}:{acc+15}]")
    for st in range(3):
        setk(st)
        for k in range(5): dma(st, st, k)
    setk(3)
    a("s_waitcnt vmcnt(10)")
    a("s_barrier")
    ts(a,1)
    reads(0,0,0)
    def stage(slot, prefetch, last, wait_n):
        a("s_waitcnt lgkmcnt(0)")
        reads(slot,1,1)
        for i in range(6): mf(0,i)
        if not last:
            a(f"s_waitcnt vmcnt({wait_n}) lgkmcnt(0)")
            a("s_barrier")
            reads((slot+1)%4,0,0)
        else:
            a("s_waitcnt lgkmcnt(0)")
        for i in range(6):
            mf(1,i)
            if prefetch and i<5: dma(None,(slot+3)%4,i)
        if prefetch: advk()
    a("s_mov_b32 s47, 4")
    a.label(f"{pfx}_loop")
    for slot in range(4): stage(slot, True, False, 5)
    a("s_sub_u32 s47, s47, 1")
    a("s_cmp_lg_u32 s47, 0")
    a(f"s_cbranch_scc1 {pfx}_loop")
    stage(0, True, False, 5)
    stage(1, False, False, 5)
    stage(2, False, False, 0)
    stage(3, False, True, 0)
    ts(a,2)
    a("v_and_b32 v13, 31, v1")
    a("v_lshrrev_b32 v14, 5, v1")
    a("v_lshrrev_b32 v15, 4, v13")
    a(f"v_mul_u32_u24 v15, {48*1024}, v15")
    a("v_and_b32 v13, 15, v13")
    a("v_lshl_add_u32 v13, v14, 4, v13")
    a("v_lshl_add_u32 v13, v13, 4, v15")
    a(f"s_lshl_b32 s20, s{S_RT}, 3")
    a("s_lshl_b32 s21, s43, 2")
    a("s_add_u32 s20, s20, s21")
    a(f"s_mul_i32 s20, s20, {48*1024}")
    a(f"s_mul_i32 s21, s{S_FC}, 6")
    a("s_mul_i32 s22, s44, 3")
    a("s_add_u32 s21, s21, s22")
    a(f"s_mov_b32 s33, {NLOG2E:#x}")
    for mt in range(3):
        a(f"s_add_u32 s22, s21, {mt}")
        a("s_lshr_b32 s23, s22, 1")
        a("s_lshl_b32 s23, s23, 10")
        a("s_and_b32 s22, s22, 1")
        a("s_lshl_b32 s22, s22, 9")
        a("s_add_u32 s23, s23, s22")
        a("s_add_u32 s23, s23, s20")
        for nt in range(2):
            acc=ACC+16*(2*mt+nt)
            tt=FA+8*((2*mt+nt)%2)
            for r in range(0,8,2):
                g0,g1,u0,u1=acc+r,acc+r+1,acc+8+r,acc+9+r
                e0,e1=FA+20,FA+21
                if exact:
                    a(f"v_cvt_pk_bf16_f32 v{e0}, v{g0}, v{g1}")
                    a(f"v_cvt_pk_bf16_f32 v{e1}, v{u0}, v{u1}")
                    a(f"v_lshlrev_b32 v{g0}, 16, v{e0}")
                    a(f"v_and_b32 v{g1}, 0xffff0000, v{e0}")
                    a(f"v_lshlrev_b32 v{u0}, 16, v{e1}")
                    a(f"v_and_b32 v{u1}, 0xffff0000, v{e1}")
                a(f"v_mul_f32 v{e0}, s33, v{g0}")
                a(f"v_mul_f32 v{e1}, s33, v{g1}")
                a(f"v_exp_f32 v{e0}, v{e0}")
                a(f"v_exp_f32 v{e1}, v{e1}")
                a(f"v_add_f32 v{e0}, 1.0, v{e0}")
                a(f"v_add_f32 v{e1}, 1.0, v{e1}")
                a(f"v_rcp_f32 v{e0}, v{e0}")
                a(f"v_rcp_f32 v{e1}, v{e1}")
                a(f"v_mul_f32 v{g0}, v{g0}, v{e0}")
                a(f"v_mul_f32 v{g1}, v{g1}, v{e1}")
                if exact:
                    a(f"v_cvt_pk_bf16_f32 v{e0}, v{g0}, v{g1}")
                    a(f"v_lshlrev_b32 v{g0}, 16, v{e0}")
                    a(f"v_and_b32 v{g1}, 0xffff0000, v{e0}")
                a(f"v_mul_f32 v{g0}, v{g0}, v{u0}")
                a(f"v_mul_f32 v{g1}, v{g1}, v{u1}")
                a(f"v_cvt_pk_bf16_f32 v{tt+r//2}, v{g0}, v{g1}")
            so = "s23"
            if nt:
                a(f"s_add_u32 s32, s23, {2*48*1024}"); so="s32"
            a(f"buffer_store_dwordx4 v[{tt}:{tt+3}], v13, s[36:39], {so} offen {cflag}")

G2_STAGE=18432
G2_YB=4*G2_STAGE
def role_g2(a, sgi, pfx="g2", hflag="", yflag=""):
    S_RT,S_CT,S_W=60,61,62
    ACC=64
    FA=96
    VH=2; VW=3
    VRH=6; VRW=7
    a(f"s_and_b32 s20, s{sgi}, 7")
    a(f"s_lshr_b32 s21, s{sgi}, 3")
    a("s_lshl_b32 s20, s20, 2")
    a("s_and_b32 s22, s21, 3")
    a(f"s_add_u32 s{S_RT}, s20, s22")
    a(f"s_lshr_b32 s{S_CT}, s21, 2")
    a(f"s_load_dwordx2 s[4:5], s[0:1], {KA['ws']}")
    a(f"s_load_dwordx2 s[6:7], s[0:1], {KA['w2']}")
    a(f"s_load_dwordx2 s[8:9], s[0:1], {KA['x']}")
    a(f"s_load_dwordx2 s[10:11], s[0:1], {KA['out']}")
    a(f"s_load_dwordx2 s[12:13], s[0:1], {KA['dsk']}")
    a("v_lshrrev_b32 v12, 6, v0")
    a("v_and_b32 v1, 63, v0")
    a(f"v_readfirstlane_b32 s{S_W}, v12")
    a("s_waitcnt lgkmcnt(0)")
    srd(a, 24, 4, T*F*2, WS_H)
    srd(a, 28, 6, F*D*2)
    srd(a, 32, 8, XBYTES)
    srd(a, 36, 10, XBYTES)
    srd(a, 48, 4, XBYTES, WS_XN)
    srd(a, 52, 4, XBYTES, WS_YT)
    srd(a, 56, 12, D*2)
    a(f"s_and_b32 s43, s{S_W}, 1")
    a(f"s_lshr_b32 s44, s{S_W}, 1")
    a(f"v_lshlrev_b32 v{VH}, 4, v1")
    a(f"s_lshl_b32 s20, s{S_RT}, 2")
    a(f"s_add_u32 s20, s20, s{S_W}")
    a(f"s_mul_i32 s20, s20, {48*1024}")
    a(f"v_add_u32 v{VH}, s20, v{VH}")
    a(f"s_lshl_b32 s40, s{S_W}, 10")
    a("s_lshl_b32 s20, s43, 1")
    a("s_mul_i32 s21, s43, 3")
    a("s_add_u32 s21, s21, 4")
    a("s_cmp_eq_u32 s44, 0")
    a("s_cselect_b32 s20, s20, s21")
    a("s_lshl_b32 s41, s20, 10")
    a("s_add_u32 s41, s41, 8192")
    a("s_lshl_b32 s20, s20, 6")
    a(f"s_mul_i32 s23, s{S_CT}, 160")
    a("s_mov_b32 s42, 0x1999999a")
    for i in range(3):
        a("v_add_u32 v13, s20, v1")
        if i: a(f"v_add_u32 v13, {64*i}, v13")
        a("v_mul_hi_u32 v14, v13, s42")
        a("v_mul_u32_u24 v15, 10, v14")
        a("v_sub_u32 v15, v13, v15")
        a("v_mul_u32_u24 v14, 1280, v14")
        a("v_lshl_add_u32 v14, v15, 4, v14")
        a(f"v_add_u32 v{VW+i}, s23, v14")
    a(f"v_lshlrev_b32 v{VRH}, 4, v1")
    a("s_lshl_b32 s20, s43, 11")
    a(f"v_add_u32 v{VRH}, s20, v{VRH}")
    a("v_bfe_u32 v13, v1, 5, 1")
    a("v_lshlrev_b32 v13, 4, v13")
    a("v_bfe_u32 v14, v1, 4, 1")
    a("v_lshl_add_u32 v13, v14, 2, v13")
    a("v_bfe_u32 v14, v1, 2, 2")
    a("v_add_u32 v13, v13, v14")
    a("v_mul_u32_u24 v13, 160, v13")
    a("v_and_b32 v14, 3, v1")
    a("v_lshl_add_u32 v13, v14, 3, v13")
    a("s_mul_i32 s20, s44, 96")
    a("s_add_u32 s20, s20, 8192")
    a(f"v_add_u32 v{VRW}, s20, v13")
    for r in range(24): a(f"v_mov_b32 v{ACC+r}, 0")
    def gen_loop(nd, L):
        nw = 2 if nd==3 else 3
        ndma = 2+nw
        def dma(slot,k):
            base=slot*G2_STAGE
            if k<2:
                a(f"s_add_u32 m0, s40, {base+4096*k}")
                if k==1: a("s_add_u32 s47, s45, 1024")
                a(f"buffer_load_dwordx4 v{VH}, s[24:27], {'s45' if k==0 else 's47'} offen {hflag} lds")
            else:
                a(f"s_add_u32 m0, s41, {base+1024*(k-2)}")
                a(f"buffer_load_dwordx4 v{VW+k-2}, s[28:31], s46 offen lds")
        def setk(st):
            a(f"s_mov_b32 s45, {st*2048}"); a(f"s_mov_b32 s46, {st*64*1280}")
        def advk():
            a("s_add_u32 s45, s45, 2048"); a(f"s_add_u32 s46, s46, {64*1280}")
        def fr(s): return FA+20*s
        def reads(slot,kbl,s):
            b=fr(s); base=slot*G2_STAGE
            for x in range(2):
                a(f"ds_read_b128 v[{b+4*x}:{b+4*x+3}], v{VRH} offset:{base+kbl*4096+x*1024}")
            for dt in range(nd):
                for j in range(2):
                    r=b+8+4*dt+2*j
                    a(f"ds_read_b64_tr_b16 v[{r}:{r+1}], v{VRW} offset:{base+(kbl*32+8*j)*160+dt*32}")
        def mfs(s):
            b=fr(s); out=[]
            for dt in range(nd):
                for x in range(2):
                    acc=ACC+4*(2*dt+x)
                    out.append(f"v_mfma_f32_16x16x32_bf16 v[{acc}:{acc+3}], v[{b+8+4*dt}:{b+8+4*dt+3}], v[{b+4*x}:{b+4*x+3}], v[{acc}:{acc+3}]")
            return out
        for st in range(3):
            setk(st)
            for k in range(ndma): dma(st,k)
        setk(3)
        a(f"s_waitcnt vmcnt({2*ndma})")
        a("s_barrier")
        ts(a,1)
        reads(0,0,0)
        def stage(slot,prefetch,last,wait_n):
            a("s_waitcnt lgkmcnt(0)")
            reads(slot,1,1)
            for m in mfs(0): a(m)
            if not last:
                a(f"s_waitcnt vmcnt({wait_n}) lgkmcnt(0)")
                a("s_barrier")
                reads((slot+1)%4,0,0)
            else: a("s_waitcnt lgkmcnt(0)")
            ms=mfs(1)
            for i,m in enumerate(ms):
                a(m)
                if prefetch and i<ndma: dma((slot+3)%4,i)
            if prefetch:
                for i in range(len(ms),ndma): dma((slot+3)%4,i)
                advk()
        a("s_mov_b32 s63, 5")
        a.label(f"{L}_loop")
        for slot in range(4): stage(slot,True,False,ndma)
        a("s_sub_u32 s63, s63, 1")
        a("s_cmp_lg_u32 s63, 0")
        a(f"s_cbranch_scc1 {L}_loop")
        stage(0,True,False,ndma)
        stage(1,False,False,ndma)
        stage(2,False,False,0)
        stage(3,False,True,0)
        ts(a,2)
        a("v_lshrrev_b32 v13, 2, v1")
        a(f"s_mul_i32 s20, s{S_CT}, 80")
        a("s_mul_i32 s21, s44, 48")
        a("s_add_u32 s20, s20, s21")
        a("v_add_u32 v13, s20, v13")
        a("v_lshlrev_b32 v13, 12, v13")
        a("v_and_b32 v14, 3, v1")
        a("v_lshl_add_u32 v13, v14, 4, v13")
        a(f"s_lshl_b32 s21, s{S_RT}, 7")
        a("s_lshl_b32 s22, s43, 6")
        a("s_add_u32 s21, s21, s22")
        a(f"s_mul_i32 s22, s{S_W}, 3072")
        for dt in range(nd):
            a(f"s_add_u32 m0, s22, {1024*dt}")
            a(f"s_add_u32 s23, s21, {dt*16*4096}")
            a(f"buffer_load_dwordx4 v13, s[52:55], s23 offen {yflag} lds")
        a("v_and_b32 v14, 15, v1")
        a("v_lshrrev_b32 v15, 4, v1")
        a(f"s_lshl_b32 s21, s{S_RT}, 6")
        a("s_lshl_b32 s23, s43, 5")
        a("s_add_u32 s21, s21, s23")
        a("v_add_u32 v14, s21, v14")
        a("v_mul_u32_u24 v14, 1280, v14")
        a("v_lshl_add_u32 v14, v15, 3, v14")
        a("s_lshl_b32 s20, s20, 1")
        a("v_add_u32 v14, s20, v14")
        a("v_lshlrev_b32 v15, 3, v15")
        a("v_add_u32 v15, s20, v15")
        XR=136; NR=160; DR=184
        for dt in range(nd):
            a(f"buffer_load_dwordx2 v[{DR+2*dt}:{DR+2*dt+1}], v15, s[56:59], 0 offen offset:{32*dt}")
            for x in range(2):
                i=2*dt+x
                a(f"s_mov_b32 s23, {x*16*1280}")
                a(f"buffer_load_dwordx2 v[{XR+2*i}:{XR+2*i+1}], v14, s[32:35], s23 offen offset:{32*dt}")
                a(f"buffer_load_dwordx2 v[{NR+2*i}:{NR+2*i+1}], v14, s[48:51], s23 offen offset:{32*dt}")
        a("v_lshrrev_b32 v16, 2, v1")
        a("v_lshlrev_b32 v16, 6, v16")
        a("v_and_b32 v17, 3, v1")
        a("v_lshl_add_u32 v16, v17, 3, v16")
        a("v_add_u32 v16, s22, v16")
        a("s_waitcnt vmcnt(0)")
        YR=192
        for dt in range(nd):
            for x in range(2):
                i=2*dt+x
                a(f"ds_read_b64_tr_b16 v[{YR+2*i}:{YR+2*i+1}], v16 offset:{dt*1024+x*32}")
        a("s_waitcnt lgkmcnt(0)")
        t0,t1,t2,t3=8,9,10,11
        for dt in range(nd):
            for x in range(2):
                i=2*dt+x; acc=ACC+4*i
                for p in range(2):
                    xr,nr,dr,yr=XR+2*i+p,NR+2*i+p,DR+2*dt+p,YR+2*i+p
                    a(f"v_lshlrev_b32 v{t0}, 16, v{nr}"); a(f"v_and_b32 v{t1}, 0xffff0000, v{nr}")
                    a(f"v_lshlrev_b32 v{t2}, 16, v{dr}"); a(f"v_and_b32 v{t3}, 0xffff0000, v{dr}")
                    a(f"v_mul_f32 v{t0}, v{t0}, v{t2}"); a(f"v_mul_f32 v{t1}, v{t1}, v{t3}")
                    a(f"v_cvt_pk_bf16_f32 v{t0}, v{t0}, v{t1}")
                    a(f"v_and_b32 v{t1}, 0xffff0000, v{t0}"); a(f"v_lshlrev_b32 v{t0}, 16, v{t0}")
                    a(f"v_lshlrev_b32 v{t2}, 16, v{yr}"); a(f"v_and_b32 v{t3}, 0xffff0000, v{yr}")
                    a(f"v_add_f32 v{t0}, v{t0}, v{t2}"); a(f"v_add_f32 v{t1}, v{t1}, v{t3}")
                    a(f"v_cvt_pk_bf16_f32 v{t0}, v{t0}, v{t1}")
                    a(f"v_and_b32 v{t1}, 0xffff0000, v{t0}"); a(f"v_lshlrev_b32 v{t0}, 16, v{t0}")
                    a(f"v_lshlrev_b32 v{t2}, 16, v{xr}"); a(f"v_and_b32 v{t3}, 0xffff0000, v{xr}")
                    a(f"v_add_f32 v{t0}, v{t0}, v{t2}"); a(f"v_add_f32 v{t1}, v{t1}, v{t3}")
                    a(f"v_cvt_pk_bf16_f32 v{t0}, v{t0}, v{t1}")
                    a(f"v_and_b32 v{t1}, 0xffff0000, v{t0}"); a(f"v_lshlrev_b32 v{t0}, 16, v{t0}")
                    a(f"v_cvt_pk_bf16_f32 v{t2}, v{acc+2*p}, v{acc+2*p+1}")
                    a(f"v_and_b32 v{t3}, 0xffff0000, v{t2}"); a(f"v_lshlrev_b32 v{t2}, 16, v{t2}")
                    a(f"v_add_f32 v{t0}, v{t0}, v{t2}"); a(f"v_add_f32 v{t1}, v{t1}, v{t3}")
                    a(f"v_cvt_pk_bf16_f32 v{xr}, v{t0}, v{t1}")
                a(f"s_mov_b32 s23, {x*16*1280}")
                a(f"buffer_store_dwordx2 v[{XR+2*i}:{XR+2*i+1}], v14, s[36:39], s23 offen offset:{32*dt}")
    a("s_cmp_eq_u32 s44, 0")
    a(f"s_cbranch_scc0 {pfx}_b")
    gen_loop(3, f"{pfx}_a")
    a(f"s_branch {pfx}_end")
    a.label(f"{pfx}_b")
    gen_loop(2, f"{pfx}_bb")
    a.label(f"{pfx}_end")
```

```python
from common import *
from gemm import g1_map, G1_STAGE, G2_STAGE
NLOG2E=0xbfb8aa3b

def role_g(a, sgi, pfx="g", pf=True, prio=2, nodot=False):
    S_RT,S_FC,S_W=60,61,62
    ACC=64; FA=160; CSA=200
    CS=204; ST=252
    VX=2; VW=3; VRX=6; VRW=8; VX2=11
    if prio: a(f"s_setprio {prio}")
    g1_map(a, sgi, S_RT, S_FC)
    a(f"s_load_dwordx2 s[4:5], s[0:1], {KA['ws']}")
    a(f"s_load_dwordx2 s[6:7], s[0:1], {KA['w1']}")
    a(f"s_load_dwordx2 s[8:9], s[0:1], {KA['w3']}")
    a(f"s_load_dwordx2 s[10:11], s[0:1], {KA['x']}")
    a(f"s_load_dwordx2 s[12:13], s[0:1], {KA['w2']}")
    a(f"s_load_dwordx2 s[14:15], s[0:1], {KA['out']}")
    a(f"s_load_dwordx2 s[16:17], s[0:1], {KA['dsk']}")
    a("v_lshrrev_b32 v12, 6, v0")
    a("v_and_b32 v1, 63, v0")
    a(f"v_readfirstlane_b32 s{S_W}, v12")
    a("s_waitcnt lgkmcnt(0)")
    srd(a, 24, 10, XBYTES)
    a(f"s_cmp_ge_u32 s{S_W}, 2")
    a("s_cselect_b32 s28, s8, s6")
    a("s_cselect_b32 s29, s9, s7")
    a(f"s_mov_b32 s30, {D*F*2}")
    a("s_mov_b32 s31, 0x00020000")
    a.protect(range(28,32))
    a("v_lshrrev_b32 v13, 2, v1")
    a("v_lshrrev_b32 v14, 3, v13")
    a("v_and_b32 v15, 3, v1")
    a("v_xor_b32 v16, v15, v14")
    a("v_xor_b32 v17, 2, v16")
    a(f"s_lshl_b32 s20, s{S_RT}, 7")
    a(f"s_lshl_b32 s21, s{S_W}, 5")
    a("s_add_u32 s20, s20, s21")
    a("v_add_u32 v13, s20, v13")
    a("v_mul_u32_u24 v13, 1280, v13")
    a(f"v_lshl_add_u32 v{VX}, v16, 4, v13")
    a(f"v_lshl_add_u32 v{VX2}, v17, 4, v13")
    a(f"v_add_u32 v{VX2}, {16*1280}, v{VX2}")
    a(f"s_and_b32 s21, s{S_W}, 1")
    a("s_mul_i32 s21, s21, 192")
    a(f"s_lshr_b32 s22, s{S_W}, 1")
    a("s_lshl_b32 s22, s22, 1")
    a(f"s_mul_i32 s23, s{S_FC}, 192")
    a("s_mov_b32 s33, 0x15555556")
    for i in range(3):
        a(f"v_add_u32 v13, s21, v1")
        if i: a(f"v_add_u32 v13, {64*i}, v13")
        a("v_mul_hi_u32 v14, v13, s33")
        a("v_mul_u32_u24 v15, 12, v14")
        a("v_sub_u32 v15, v13, v15")
        a("v_xor_b32 v15, s22, v15")
        a("v_mul_u32_u24 v14, 3072, v14")
        a("v_lshl_add_u32 v14, v15, 4, v14")
        a(f"v_add_u32 v{VW+i}, s23, v14")
    a(f"s_lshl_b32 s40, s{S_W}, 11")
    a(f"s_lshr_b32 s41, s{S_W}, 1")
    a("s_mul_i32 s41, s41, 6144")
    a(f"s_and_b32 s42, s{S_W}, 1")
    a("s_mul_i32 s42, s42, 3072")
    a("s_add_u32 s41, s41, s42")
    a("s_add_u32 s41, s41, 8192")
    def dma(slot, k):
        base=slot*G1_STAGE
        if k<2:
            a(f"s_add_u32 m0, s40, {base+1024*k}")
            a(f"buffer_load_dwordx4 v{VX if k==0 else VX2}, s[24:27], s45 offen lds")
        else:
            a(f"s_add_u32 m0, s41, {base+1024*(k-2)}")
            a(f"buffer_load_dwordx4 v{VW+k-2}, s[28:31], s46 offen lds")
    def setk(stage):
        a(f"s_mov_b32 s45, {stage*64}"); a(f"s_mov_b32 s46, {stage*32*3072}")
    def advk():
        a("s_add_u32 s45, s45, 64"); a(f"s_add_u32 s46, s46, {32*3072}")
    for st in range(3):
        setk(st)
        for k in range(5): dma(st, k)
    setk(3)
    for k in range(3): dma(3, k)
    srd(a, 36, 4, T*F*2, WS_H)
    srd(a, 48, 4, T*8, WS_ST)
    flag_srd(a, 4)
    a(f"s_or_b32 s20, s{sgi}, s{S_W}")
    a("s_cmp_eq_u32 s20, 0")
    a(f"s_cbranch_scc0 {pfx}_nonn")
    nonce_publish(a, 13, 20)
    a.label(f"{pfx}_nonn")
    a(f"s_lshr_b32 s43, s{S_W}, 1")
    a(f"s_and_b32 s44, s{S_W}, 1")
    a("v_and_b32 v13, 31, v1")
    a("v_lshrrev_b32 v14, 5, v1")
    a("v_lshrrev_b32 v15, 3, v13")
    a("v_xor_b32 v15, v15, v14")
    a("v_lshlrev_b32 v13, 6, v13")
    a("s_lshl_b32 s20, s43, 12")
    a("v_add_u32 v13, s20, v13")
    a(f"v_lshl_add_u32 v{VRX}, v15, 4, v13")
    a(f"v_xor_b32 v{VRX+1}, 32, v{VRX}")
    a("v_bfe_u32 v13, v1, 4, 1")
    a("v_bfe_u32 v15, v1, 2, 2")
    a("v_lshl_add_u32 v15, v14, 3, v15")
    a("v_mul_u32_u24 v15, 192, v15")
    a("v_mul_u32_u24 v16, 6144, v13")
    a("v_add_u32 v15, v15, v16")
    a("v_and_b32 v16, 3, v1")
    a("v_lshl_add_u32 v15, v16, 3, v15")
    a("v_add_u32 v15, 8192, v15")
    a("s_mul_i32 s20, s44, 3")
    for mt in range(3):
        a(f"s_add_u32 s21, s20, {mt}")
        a("v_xor_b32 v16, s21, v13")
        a(f"v_lshl_add_u32 v{VRW+mt}, v16, 5, v15")
    for r in range(96): a(f"v_mov_b32 v{ACC+r}, 0")
    for r in range(3): a(f"v_mov_b32 v{CSA+r}, 0")
    def fr(s): return FA+20*s
    def reads(slot, kk, s):
        b=fr(s); base=slot*G1_STAGE
        for nt in range(2):
            a(f"ds_read_b128 v[{b+4*nt}:{b+4*nt+3}], v{VRX+kk} offset:{base+nt*2048}")
        for mt in range(3):
            for j in range(2):
                r=b+8+4*mt+2*j
                a(f"ds_read_b64_tr_b16 v[{r}:{r+1}], v{VRW+mt} offset:{base+kk*16*192+j*4*192}")
    def mf(s, i):
        b=fr(s); mt,nt=i//2,i%2
        acc=ACC+16*(2*mt+nt)
        a(f"v_mfma_f32_32x32x16_bf16 v[{acc}:{acc+15}], v[{b+8+4*mt}:{b+8+4*mt+3}], v[{b+4*nt}:{b+4*nt+3}], v[{acc}:{acc+15}]")
    def csdot(s, i):
        b=fr(s)+8
        if nodot: return
        for q in (2*i,2*i+1):
            mt=q//4
            a(f"v_dot2c_f32_bf16 v{CSA+mt}, 0x3f803f80, v{b+q}")
    def main(wm, L):
        a("s_waitcnt vmcnt(13)")
        a("s_barrier")
        ts(a,1)
        reads(0,0,0)
        def stage(slot, pa, pb, last, wait_n, mid=None, end=None):
            a("s_waitcnt lgkmcnt(0)")
            reads(slot,1,1)
            for i in range(6):
                mf(0,i)
                if wm==0: csdot(0,i)
                if pa and i==1: dma((slot+3)%4,3)
                if pa and i==4: dma((slot+3)%4,4)
            if pa: advk()
            if not last:
                a(f"s_waitcnt vmcnt({wait_n}) lgkmcnt(0)")
                a("s_barrier")
                reads((slot+1)%4,0,0)
            else:
                a("s_waitcnt lgkmcnt(0)")
            if mid: mid()
            for i in range(6):
                mf(1,i)
                if wm==1: csdot(1,i)
                if pb and i in (0,2,4): dma(slot,i//2)
            if end: end()
        def issue_flags():
            a("global_load_dword v20, v21, s[18:19] sc1")
            a(f"buffer_load_dwordx2 v[{ST}:{ST+1}], v23, s[48:51], 0 offen sc1")
            a(f"buffer_load_dwordx2 v[{ST+2}:{ST+3}], v23, s[48:51], 0 offen offset:256 sc1")
        def check_flags():
            a.label(f"{L}_chk")
            a(f"v_readfirstlane_b32 s{S_NONCE}, v20")
            a(f"v_xor_b32 v19, v20, v{ST+1}")
            a(f"v_xor_b32 v22, v20, v{ST+3}")
            a(f"v_or_b32 v19, v19, v22")
            a(f"v_cmp_ne_u32 vcc, 0, v19")
            a(f"s_cmp_eq_u32 s{S_NONCE}, 0")
            a(f"s_cbranch_scc1 {L}_slow")
            a("s_nop 1")
            a(f"s_cbranch_vccz {L}_fast")
            a.label(f"{L}_slow")
            a("s_sub_u32 s33, s33, 1")
            a("s_cmp_eq_u32 s33, 0")
            a(f"s_cbranch_scc1 {L}_fast")
            a("s_sleep 2")
            issue_flags()
            a("s_waitcnt vmcnt(0)")
            a(f"s_branch {L}_chk")
            a.label(f"{L}_fast")
        a("s_mov_b32 s47, 4")
        a.label(f"{L}_loop")
        for slot in range(4): stage(slot, True, True, False, 10)
        import common
        if common.PROF and getattr(common,'GL',False):
            a("s_memrealtime s[92:93]")
            a("s_waitcnt lgkmcnt(0)")
            for it,slotreg in ((4,84),(3,86),(2,88),(1,90)):
                a(f"s_cmp_eq_u32 s47, {it}")
                a(f"s_cselect_b32 s{slotreg}, s92, s{slotreg}")
        a("s_sub_u32 s47, s47, 1")
        a("s_cmp_lg_u32 s47, 0")
        a(f"s_cbranch_scc1 {L}_loop")
        stage(0, True, False, False, 10, end=issue_flags)
        stage(1, False, False, False, 8)
        stage(2, False, False, False, 0, mid=check_flags)
        stage(3, False, False, True, 0)
    a(f"s_load_dwordx2 s[18:19], s[0:1], {KA['dbg']}")
    a("v_mov_b32 v21, 0")
    a(f"s_mov_b32 s33, {SPIN_MAX}")
    a("v_and_b32 v23, 31, v1")
    a(f"s_lshl_b32 s20, s{S_RT}, 7")
    a("s_lshl_b32 s21, s43, 6")
    a("s_add_u32 s20, s20, s21")
    a("v_add_u32 v23, s20, v23")
    a("v_lshlrev_b32 v23, 3, v23")
    a("s_waitcnt lgkmcnt(0)")
    a("s_cmp_eq_u32 s43, 0")
    a(f"s_cbranch_scc0 {pfx}_m1")
    main(0, f"{pfx}_m0l")
    a(f"s_branch {pfx}_mdone")
    a.label(f"{pfx}_m1")
    main(1, f"{pfx}_m1l")
    a.label(f"{pfx}_mdone")
    import common
    GL=common.PROF and getattr(common,'GL',False)
    if GL: ts(a,6)
    else: ts(a,2)
    srd(a, 28, 12, F*D*2)
    for mt in range(3):
        a(f"v_mov_b32 v{FA+mt}, v{CSA+mt}")
        a(f"v_permlane32_swap_b32 v{CSA+mt}, v{FA+mt}")
        a(f"v_add_f32 v{CSA+mt}, v{CSA+mt}, v{FA+mt}")
    a("v_and_b32 v16, 31, v1")
    a("v_lshlrev_b32 v16, 2, v16")
    a(f"s_mul_i32 s20, s{S_W}, 384")
    a("v_add_u32 v17, s20, v16")
    for mt in range(3): a(f"ds_write_b32 v17, v{CSA+mt} offset:{128*mt}")
    a(f"s_xor_b32 s21, s{S_W}, 2")
    a("s_mul_i32 s21, s21, 384")
    a("v_add_u32 v18, s21, v16")
    a("s_waitcnt lgkmcnt(0)")
    a("s_barrier")
    for mt in range(3): a(f"ds_read_b32 v{FA+mt}, v18 offset:{128*mt}")
    a("s_waitcnt lgkmcnt(0)")
    for mt in range(3): a(f"v_add_f32 v{CSA+mt}, v{CSA+mt}, v{FA+mt}")
    a("v_add_u32 v17, 2048, v17")
    for mt in range(3): a(f"ds_write_b32 v17, v{CSA+mt} offset:{128*mt}")
    a("v_lshrrev_b32 v14, 5, v1")
    a("v_lshlrev_b32 v14, 4, v14")
    a(f"s_mul_i32 s20, s{S_W}, 384")
    a("s_add_u32 s20, s20, 2048")
    a("v_add_u32 v14, s20, v14")
    a("s_waitcnt lgkmcnt(0)")
    for mt in range(3):
        for q in range(4):
            r=CS+16*mt+4*q
            a(f"ds_read_b128 v[{r}:{r+3}], v14 offset:{128*mt+32*q}")
    a("v_and_b32 v13, 31, v1")
    a("v_lshrrev_b32 v14, 5, v1")
    a("v_lshrrev_b32 v15, 4, v13")
    a(f"v_mul_u32_u24 v15, {48*1024}, v15")
    a("v_and_b32 v13, 15, v13")
    a("v_lshl_add_u32 v13, v14, 4, v13")
    a("v_lshl_add_u32 v13, v13, 4, v15")
    a(f"s_lshl_b32 s20, s{S_RT}, 3")
    a("s_lshl_b32 s21, s43, 2")
    a("s_add_u32 s20, s20, s21")
    a(f"s_mul_i32 s20, s20, {48*1024}")
    a(f"s_mul_i32 s21, s{S_FC}, 6")
    a("s_mul_i32 s22, s44, 3")
    a("s_add_u32 s21, s21, s22")
    a("s_waitcnt vmcnt(0) lgkmcnt(0)")
    if pf:
        a(f"s_lshr_b32 s34, s{sgi}, 3")
        a("s_lshl_b32 s34, s34, 2")
        a(f"s_add_u32 s34, s34, s{S_W}")
        a("s_lshl_b32 s34, s34, 14")
        a("v_lshlrev_b32 v24, 7, v1")
        a("v_add_u32 v24, s34, v24")
        a("buffer_load_dword v25, v24, s[28:31], 0 offen")
        a("v_add_u32 v24, 8192, v24")
        a("buffer_load_dword v26, v24, s[28:31], 0 offen")
    K=FA+24
    for nt in range(2):
        m,rs=ST+2*nt,ST+2*nt+1
        k=K+6*nt
        a(f"v_and_b32 v{rs}, 0xffff0000, v{m}")
        a(f"v_lshlrev_b32 v{m}, 16, v{m}")
        a(f"v_mul_f32 v{k+4}, v{rs}, v{rs}")
        a(f"v_rcp_f32 v{rs}, v{rs}")
        a(f"v_sub_f32 v{k}, 0, v{m}"); a(f"v_mov_b32 v{k+1}, v{k}")
        a(f"v_mul_f32 v{k+2}, {NLOG2E:#x}, v{rs}"); a(f"v_mov_b32 v{k+3}, v{k+2}")
        a(f"v_mov_b32 v{k+5}, v{k+4}")
    for mt in range(3):
        a(f"s_add_u32 s22, s21, {mt}")
        a("s_lshr_b32 s23, s22, 1")
        a("s_lshl_b32 s23, s23, 10")
        a("s_and_b32 s22, s22, 1")
        a("s_lshl_b32 s22, s22, 9")
        a("s_add_u32 s23, s23, s22")
        a("s_add_u32 s23, s23, s20")
        for nt in range(2):
            acc=ACC+16*(2*mt+nt); k=K+6*nt
            tt=FA+4*((2*mt+nt)%2)
            E=FA+8
            cs=CS+16*mt
            for r2 in (0,4):
                for j,r in enumerate((r2,r2+2)):
                    g,u=acc+r,acc+8+r
                    a(f"v_pk_fma_f32 v[{g}:{g+1}], v[{k}:{k+1}], v[{cs+r}:{cs+r+1}], v[{g}:{g+1}]")
                    a(f"v_pk_fma_f32 v[{u}:{u+1}], v[{k}:{k+1}], v[{cs+8+r}:{cs+8+r+1}], v[{u}:{u+1}]")
                for j,r in enumerate((r2,r2+2)):
                    g=acc+r; e=E+2*j
                    a(f"v_pk_mul_f32 v[{e}:{e+1}], v[{k+2}:{k+3}], v[{g}:{g+1}]")
                for j in range(2):
                    e=E+2*j
                    a(f"v_exp_f32 v{e}, v{e}"); a(f"v_exp_f32 v{e+1}, v{e+1}")
                for j,r in enumerate((r2,r2+2)):
                    g,u=acc+r,acc+8+r
                    a(f"v_pk_mul_f32 v[{g}:{g+1}], v[{g}:{g+1}], v[{u}:{u+1}]")
                for j in range(2):
                    e=E+2*j
                    a(f"v_pk_fma_f32 v[{e}:{e+1}], v[{e}:{e+1}], v[{k+4}:{k+5}], v[{k+4}:{k+5}]")
                for j in range(2):
                    e=E+2*j
                    a(f"v_rcp_f32 v{e}, v{e}"); a(f"v_rcp_f32 v{e+1}, v{e+1}")
                for j,r in enumerate((r2,r2+2)):
                    g=acc+r; e=E+2*j
                    a(f"v_pk_mul_f32 v[{g}:{g+1}], v[{g}:{g+1}], v[{e}:{e+1}]")
                for j,r in enumerate((r2,r2+2)):
                    g=acc+r
                    a(f"v_cvt_pk_bf16_f32 v{tt+r//2}, v{g}, v{g+1}")
            so="s23"
            if nt:
                a(f"s_add_u32 s32, s23, {2*48*1024}"); so="s32"
            a(f"buffer_store_dwordx4 v[{tt}:{tt+3}], v13, s[36:39], {so} offen sc1")
    if not GL: ts(a,3)
    a("s_waitcnt vmcnt(0)")
    a("s_barrier")
    a(f"s_lshl_b32 s20, s{S_RT}, 4")
    a(f"s_add_u32 s20, s20, s{S_FC}")
    a("s_lshl_b32 s20, s20, 2")
    a(f"s_add_u32 s20, s20, {WS_FH-WS_FLN}")
    a(f"s_cmp_eq_u32 s{S_W}, 0")
    a(f"s_cbranch_scc0 {pfx}_nofh")
    flag_set(a, 14, 20, pfx)
    a.label(f"{pfx}_nofh")
    S_RT2,S_CT=60,61
    ACC=64; FA=96; VH=2; VW=3; VRH=6; VRW=7
    XR=136; DR=160; ST2=168; YR=176
    a(f"s_and_b32 s20, s{sgi}, 7")
    a(f"s_lshr_b32 s21, s{sgi}, 3")
    a("s_lshl_b32 s20, s20, 2")
    a("s_and_b32 s22, s21, 3")
    a(f"s_add_u32 s{S_RT2}, s20, s22")
    a(f"s_lshr_b32 s{S_CT}, s21, 2")
    srd(a, 32, 14, XBYTES)
    srd(a, 52, 4, XBYTES, WS_YT)
    srd(a, 56, 16, D*2)
    a(f"s_and_b32 s43, s{S_W}, 1")
    a(f"s_lshr_b32 s44, s{S_W}, 1")
    a(f"v_lshlrev_b32 v{VH}, 4, v1")
    a(f"s_lshl_b32 s20, s{S_RT2}, 2")
    a(f"s_add_u32 s20, s20, s{S_W}")
    a(f"s_mul_i32 s20, s20, {48*1024}")
    a(f"v_add_u32 v{VH}, s20, v{VH}")
    a(f"s_lshl_b32 s40, s{S_W}, 10")
    a("s_lshl_b32 s20, s43, 1")
    a("s_mul_i32 s21, s43, 3")
    a("s_add_u32 s21, s21, 4")
    a("s_cmp_eq_u32 s44, 0")
    a("s_cselect_b32 s20, s20, s21")
    a("s_lshl_b32 s41, s20, 10")
    a("s_add_u32 s41, s41, 8192")
    a("s_lshl_b32 s20, s20, 6")
    a(f"s_mul_i32 s23, s{S_CT}, 160")
    a("s_mov_b32 s42, 0x1999999a")
    for i in range(3):
        a("v_add_u32 v13, s20, v1")
        if i: a(f"v_add_u32 v13, {64*i}, v13")
        a("v_mul_hi_u32 v14, v13, s42")
        a("v_mul_u32_u24 v15, 10, v14")
        a("v_sub_u32 v15, v13, v15")
        a("v_mul_u32_u24 v14, 1280, v14")
        a("v_lshl_add_u32 v14, v15, 4, v14")
        a(f"v_add_u32 v{VW+i}, s23, v14")
    a(f"v_lshlrev_b32 v{VRH}, 4, v1")
    a("s_lshl_b32 s20, s43, 11")
    a(f"v_add_u32 v{VRH}, s20, v{VRH}")
    a("v_bfe_u32 v13, v1, 5, 1")
    a("v_lshlrev_b32 v13, 4, v13")
    a("v_bfe_u32 v14, v1, 4, 1")
    a("v_lshl_add_u32 v13, v14, 2, v13")
    a("v_bfe_u32 v14, v1, 2, 2")
    a("v_add_u32 v13, v13, v14")
    a("v_mul_u32_u24 v13, 160, v13")
    a("v_and_b32 v14, 3, v1")
    a("v_lshl_add_u32 v13, v14, 3, v13")
    a("s_mul_i32 s20, s44, 96")
    a("s_add_u32 s20, s20, 8192")
    a(f"v_add_u32 v{VRW}, s20, v13")
    for r in range(24): a(f"v_mov_b32 v{ACC+r}, 0")
    def gen_loop(nd, L):
        nw = 2 if nd==3 else 3
        ndma = 2+nw
        def dma(slot,k):
            base=slot*G2_STAGE
            if k<2:
                a(f"s_add_u32 m0, s40, {base+4096*k}")
                if k==1: a("s_add_u32 s47, s45, 1024")
                a(f"buffer_load_dwordx4 v{VH}, s[36:39], {'s45' if k==0 else 's47'} offen sc1 lds")
            else:
                a(f"s_add_u32 m0, s41, {base+1024*(k-2)}")
                a(f"buffer_load_dwordx4 v{VW+k-2}, s[28:31], s46 offen lds")
        def setk(st):
            a(f"s_mov_b32 s45, {st*2048}"); a(f"s_mov_b32 s46, {st*64*1280}")
        def advk():
            a("s_add_u32 s45, s45, 2048"); a(f"s_add_u32 s46, s46, {64*1280}")
        def fr(s): return FA+20*s
        def reads(slot,kbl,s):
            b=fr(s); base=slot*G2_STAGE
            for x in range(2):
                a(f"ds_read_b128 v[{b+4*x}:{b+4*x+3}], v{VRH} offset:{base+kbl*4096+x*1024}")
            for dt in range(nd):
                for j in range(2):
                    r=b+8+4*dt+2*j
                    a(f"ds_read_b64_tr_b16 v[{r}:{r+1}], v{VRW} offset:{base+(kbl*32+8*j)*160+dt*32}")
        def mfs(s):
            b=fr(s); out=[]
            for dt in range(nd):
                for x in range(2):
                    acc=ACC+4*(2*dt+x)
                    out.append(f"v_mfma_f32_16x16x32_bf16 v[{acc}:{acc+3}], v[{b+8+4*dt}:{b+8+4*dt+3}], v[{b+4*x}:{b+4*x+3}], v[{acc}:{acc+3}]")
            return out
        nb = (ndma+1)//2
        for st in range(4):
            setk(st)
            for k in range(2,ndma): dma(st,k)
        a("v_and_b32 v14, 15, v1")
        a("v_lshrrev_b32 v15, 4, v1")
        a(f"s_lshl_b32 s21, s{S_RT2}, 6")
        a("s_lshl_b32 s23, s43, 5")
        a("s_add_u32 s21, s21, s23")
        a("v_add_u32 v14, s21, v14")
        a("v_lshlrev_b32 v16, 3, v14")
        a("v_mul_u32_u24 v14, 1280, v14")
        a("v_lshl_add_u32 v14, v15, 3, v14")
        a(f"s_mul_i32 s20, s{S_CT}, 80")
        a("s_mul_i32 s21, s44, 48")
        a("s_add_u32 s20, s20, s21")
        a("s_lshl_b32 s22, s20, 1")
        a("v_add_u32 v14, s22, v14")
        a("v_lshlrev_b32 v15, 3, v15")
        a("v_add_u32 v15, s22, v15")
        for dt in range(nd):
            a(f"buffer_load_dwordx2 v[{DR+2*dt}:{DR+2*dt+1}], v15, s[56:59], 0 offen offset:{32*dt}")
            for x in range(2):
                i=2*dt+x
                a(f"s_mov_b32 s23, {x*16*1280}")
                a(f"buffer_load_dwordx2 v[{XR+2*i}:{XR+2*i+1}], v14, s[24:27], s23 offen offset:{32*dt}")
        a("v_lshrrev_b32 v13, 2, v1")
        a("v_add_u32 v13, s20, v13")
        a("v_lshlrev_b32 v13, 12, v13")
        a("v_and_b32 v17, 3, v1")
        a("v_lshl_add_u32 v10, v17, 4, v13")
        a(f"v_cmp_gt_u32 vcc, {16*nd}, v1")
        a("v_cndmask_b32 v11, 0, v1, vcc")
        a("v_add_u32 v11, s20, v11")
        a("v_lshlrev_b32 v11, 2, v11")
        a("v_and_b32 v17, 15, v1")
        a(f"s_lshr_b32 s21, s{S_RT2}, 1")
        a("s_lshl_b32 s21, s21, 4")
        a("v_add_u32 v17, s21, v17")
        a("v_lshlrev_b32 v17, 2, v17")
        poll(a, 17, 18, WS_FH-WS_FLN, 20, f"{L}_ph")
        if not GL: ts(a,4)
        a(f"buffer_load_dwordx2 v[{ST2}:{ST2+1}], v16, s[48:51], 0 offen sc1")
        a(f"buffer_load_dwordx2 v[{ST2+2}:{ST2+3}], v16, s[48:51], 0 offen offset:128 sc1")
        if pf:
            a("v_lshlrev_b32 v13, 7, v1")
            a(f"s_lshl_b32 s20, s{S_RT2}, 2")
            a(f"s_add_u32 s20, s20, s{S_W}")
            a(f"s_mul_i32 s20, s20, {48*1024}")
            a(f"s_mul_i32 s21, s{S_CT}, 6144")
            a("s_add_u32 s20, s20, s21")
            a("s_mov_b32 exec_hi, 0xffff")
            a("buffer_load_dword v17, v13, s[36:39], s20 offen sc1")
            a("s_mov_b64 exec, -1")
        for st in range(4):
            setk(st)
            for k in range(2): dma(st,k)
        a("s_waitcnt vmcnt(0)")
        a("s_barrier")
        if not GL: ts(a,5)
        reads(0,0,0)
        def yflag():
            a(f"s_mov_b32 s20, {WS_FY-WS_FLN}")
            a(f"buffer_load_dword v17, v11, s[{S_FLG}:{S_FLG+3}], s20 offen sc1")
        def yfetch():
            a(f"v_cmp_ne_u32 vcc, s{S_NONCE}, v17")
            a("s_nop 4")
            a(f"s_cbranch_vccz {L}_yok")
            poll(a, 11, 17, WS_FY-WS_FLN, 20, f"{L}_py")
            a.label(f"{L}_yok")
            a(f"s_lshl_b32 s21, s{S_RT2}, 7")
            a("s_lshl_b32 s22, s43, 6")
            a("s_add_u32 s21, s21, s22")
            a(f"s_mul_i32 s22, s{S_W}, 3072")
            for dt in range(nd):
                a(f"s_add_u32 m0, s22, {1024*dt}")
                a(f"s_add_u32 s23, s21, {dt*16*4096}")
                a(f"buffer_load_dwordx4 v10, s[52:55], s23 offen sc1 lds")
        def stage(slot,pa,pb,last,wait_n,mid=None):
            a("s_waitcnt lgkmcnt(0)")
            reads(slot,1,1)
            ms=mfs(0); todo=list(range(nb,ndma)) if pa else []
            for i,m in enumerate(ms):
                a(m)
                if todo and i%2==1: dma((slot+3)%4, todo.pop(0))
            for k in todo: dma((slot+3)%4,k)
            if pa=='adv' or pa: advk()
            if not last:
                a(f"s_waitcnt vmcnt({wait_n}) lgkmcnt(0)")
                a("s_barrier")
                reads((slot+1)%4,0,0)
            else: a("s_waitcnt lgkmcnt(0)")
            if mid: mid()
            ms=mfs(1); todo=list(range(nb)) if pb else []
            for i,m in enumerate(ms):
                a(m)
                if todo and (i%2==0 or len(ms)-i<=len(todo)): dma(slot, todo.pop(0))
            for k in todo: dma(slot,k)
        setk(3)
        def first():
            a("s_waitcnt lgkmcnt(0)")
            reads(0,1,1)
            for m in mfs(0): a(m)
            advk()
            a("s_waitcnt lgkmcnt(0)")
            a("s_barrier")
            reads(1,0,0)
            ms=mfs(1); todo=list(range(nb))
            for i,m in enumerate(ms):
                a(m)
                if todo and (i%2==0 or len(ms)-i<=len(todo)): dma(0, todo.pop(0))
            for k in todo: dma(0,k)
        first()
        for slot in (1,2,3): stage(slot,True,True,False,2*ndma)
        a("s_mov_b32 s63, 4")
        a.label(f"{L}_loop")
        for slot in range(4): stage(slot,True,True,False,2*ndma)
        a("s_sub_u32 s63, s63, 1")
        a("s_cmp_lg_u32 s63, 0")
        a(f"s_cbranch_scc1 {L}_loop")
        stage(0,True,False,False,2*ndma,mid=yflag)
        stage(1,False,False,False,ndma+1,mid=None)
        stage(2,False,False,False,0,mid=yfetch)
        stage(3,False,False,True,0)
        if not GL: ts(a,6)
        a("v_lshrrev_b32 v16, 2, v1")
        a("v_lshlrev_b32 v16, 6, v16")
        a("v_and_b32 v17, 3, v1")
        a("v_lshl_add_u32 v16, v17, 3, v16")
        a(f"s_mul_i32 s22, s{S_W}, 3072")
        a("v_add_u32 v16, s22, v16")
        for x in range(2):
            a(f"v_and_b32 v{ST2+2*x+1}, 0xffff0000, v{ST2+2*x}")
            a(f"v_rcp_f32 v{ST2+2*x+1}, v{ST2+2*x+1}")
            a(f"v_lshlrev_b32 v{ST2+2*x}, 16, v{ST2+2*x}")
            a(f"v_mul_f32 v{ST2+2*x}, v{ST2+2*x}, v{ST2+2*x+1}")
            a(f"v_sub_f32 v{ST2+2*x}, 0, v{ST2+2*x}")
        DF=200
        for dt in range(nd):
            for p in range(2):
                a(f"v_lshlrev_b32 v{DF+4*dt+2*p}, 16, v{DR+2*dt+p}")
                a(f"v_and_b32 v{DF+4*dt+2*p+1}, 0xffff0000, v{DR+2*dt+p}")
        a("s_waitcnt vmcnt(0)")
        for dt in range(nd):
            for x in range(2):
                i=2*dt+x
                a(f"ds_read_b64_tr_b16 v[{YR+2*i}:{YR+2*i+1}], v16 offset:{dt*1024+x*32}")
        t0,t1,t2,t3=8,9,12,13
        for dt in range(nd):
            for x in range(2):
                i=2*dt+x; acc=ACC+4*i
                a(f"s_waitcnt lgkmcnt({2*nd-1-i})")
                for p in range(2):
                    xr,yr=XR+2*i+p,YR+2*i+p
                    a(f"v_lshlrev_b32 v{t0}, 16, v{xr}"); a(f"v_and_b32 v{t1}, 0xffff0000, v{xr}")
                    a(f"v_add_f32 v{acc+2*p}, v{acc+2*p}, v{t0}"); a(f"v_add_f32 v{acc+2*p+1}, v{acc+2*p+1}, v{t1}")
                    a(f"v_fma_f32 v{t0}, v{t0}, v{ST2+2*x+1}, v{ST2+2*x}"); a(f"v_fma_f32 v{t1}, v{t1}, v{ST2+2*x+1}, v{ST2+2*x}")
                    a(f"v_lshlrev_b32 v{t2}, 16, v{yr}"); a(f"v_and_b32 v{t3}, 0xffff0000, v{yr}")
                    a(f"v_fmac_f32 v{t2}, v{t0}, v{DF+4*dt+2*p}"); a(f"v_fmac_f32 v{t3}, v{t1}, v{DF+4*dt+2*p+1}")
                    a(f"v_add_f32 v{t2}, v{t2}, v{acc+2*p}"); a(f"v_add_f32 v{t3}, v{t3}, v{acc+2*p+1}")
                    a(f"v_cvt_pk_bf16_f32 v{xr}, v{t2}, v{t3}")
                a(f"s_mov_b32 s23, {x*16*1280}")
                a(f"buffer_store_dwordx2 v[{XR+2*i}:{XR+2*i+1}], v14, s[32:35], s23 offen offset:{32*dt}")
    a("s_cmp_eq_u32 s44, 0")
    a(f"s_cbranch_scc0 {pfx}_b")
    gen_loop(3, f"{pfx}_2a")
    a(f"s_branch {pfx}_end")
    a.label(f"{pfx}_b")
    gen_loop(2, f"{pfx}_2b")
    a.label(f"{pfx}_end")
```

```python
from common import *
def reduce8(a, v):
    a(f"v_add_f32_dpp v{v}, v{v}, v{v} quad_perm:[1,0,3,2] row_mask:0xf bank_mask:0xf")
    a(f"v_add_f32_dpp v{v}, v{v}, v{v} quad_perm:[2,3,0,1] row_mask:0xf bank_mask:0xf")
    a(f"v_add_f32_dpp v{v}, v{v}, v{v} row_half_mirror row_mask:0xf bank_mask:0xf")
def lwave(a, swg, lds_base, pfx, pf=True):
    SR=8
    TR=48
    GR=88
    VO=108
    X=120
    PFD=249
    a("v_and_b32 v1, 63, v0")
    a(f"s_load_dwordx2 s[4:5], s[0:1], {KA['x']}")
    a(f"s_load_dwordx2 s[6:7], s[0:1], {KA['ws']}")
    a(f"s_load_dwordx2 s[16:17], s[0:1], {KA['dbg']}")
    a(f"s_load_dwordx2 s[12:13], s[0:1], {KA['w1']}")
    a(f"s_load_dwordx2 s[14:15], s[0:1], {KA['w3']}")
    a(f"s_and_b32 s65, s{swg}, 7")
    a(f"s_lshr_b32 s66, s{swg}, 3")
    a("v_lshrrev_b32 v2, 3, v1")
    a(f"s_lshl_b32 s20, s{swg}, 3")
    a("v_add_u32 v6, s20, v2")
    a("v_mul_u32_u24 v3, 1280, v6")
    a("v_and_b32 v4, 7, v1")
    a("v_lshl_add_u32 v3, v4, 4, v3")
    a("s_waitcnt lgkmcnt(0)")
    srd(a, 8, 4, XBYTES)
    for i in range(10):
        a(f"buffer_load_dwordx4 v[{SR+4*i}:{SR+4*i+3}], v3, s[8:11], 0 offen offset:{128*i}")
    a("v_mov_b32 v7, 0")
    a("global_load_dword v5, v7, s[16:17] sc1")
    a("s_mov_b32 s22, 0x1999999a")
    a("s_lshl_b32 s20, s66, 6")
    a("s_mul_i32 s21, s65, 160")
    for i in range(10):
        a(f"v_add_u32 v{X}, {64*i}, v1")
        a(f"v_mul_hi_u32 v{VO+i}, v{X}, s22")
        a(f"v_mul_u32_u24 v{X+1}, 10, v{VO+i}")
        a(f"v_sub_u32 v{X+1}, v{X}, v{X+1}")
        a(f"v_add_u32 v{VO+i}, s20, v{VO+i}")
        a(f"v_mul_u32_u24 v{X}, 1280, v{VO+i}")
        a(f"v_lshl_add_u32 v{X}, v{X+1}, 4, v{X}")
        a(f"buffer_load_dwordx4 v[{TR+4*i}:{TR+4*i+3}], v{X}, s[8:11], s21 offen")
    npf=0
    if pf:
        srd(a, 24, 12, D*F*2); srd(a, 28, 14, D*F*2)
        a("s_mov_b32 s22, 0x15555556")
        a("s_and_b32 s23, s65, 1")
        a("s_mul_i32 s23, s23, 1536")
        for i in range(4):
            a("s_add_u32 s20, s66, %d" % (32*i))
            a("s_lshl_b32 s20, s20, 6")
            a(f"v_add_u32 v{X}, s20, v1")
            a(f"v_mul_hi_u32 v{X+1}, v{X}, s22")
            a(f"v_mul_u32_u24 v{X+2}, 12, v{X+1}")
            a(f"v_sub_u32 v{X+2}, v{X}, v{X+2}")
            a(f"v_mul_u32_u24 v{X+1}, 3072, v{X+1}")
            a(f"v_lshl_add_u32 v{X+1}, v{X+2}, 7, v{X+1}")
            a(f"buffer_load_dword v{PFD}, v{X+1}, s[24:27], s23 offen")
            a(f"buffer_load_dword v{PFD+1}, v{X+1}, s[28:31], s23 offen")
        a("s_mov_b32 s22, 0x1999999a")
        a("s_lshr_b32 s23, s65, 1")
        a("s_lshl_b32 s23, s23, 9")
        for i in range(3):
            a("s_add_u32 s20, s66, %d" % (32*i))
            a("s_lshl_b32 s20, s20, 6")
            a(f"v_add_u32 v{X}, s20, v1")
            a(f"v_mul_hi_u32 v{X+1}, v{X}, s22")
            a(f"v_mul_u32_u24 v{X+2}, 10, v{X+1}")
            a(f"v_sub_u32 v{X+2}, v{X}, v{X+2}")
            a(f"v_add_u32 v{X+1}, s23, v{X+1}")
            a(f"v_mul_u32_u24 v{X+1}, 1280, v{X+1}")
            a(f"v_lshl_add_u32 v{X+1}, v{X+2}, 7, v{X+1}")
            a(f"v_bfrev_b32 v{X+2}, 1")
            a(f"v_cmp_gt_u32 vcc, 5120, v{X}")
            a(f"v_cndmask_b32 v{X+1}, v{X+2}, v{X+1}, vcc")
            a(f"buffer_load_dword v{PFD+2}, v{X+1}, s[8:11], 0 offen")
        npf=11
    srd(a, 12, 6, T*8, WS_ST)
    srd(a, 52, 6, XBYTES, WS_XNT)
    flag_srd(a, 6)
    a(f"s_waitcnt vmcnt({10+npf})")
    ts(a,5)
    a(f"v_readfirstlane_b32 s{S_NONCE}, v5")
    a(f"s_cmp_eq_u32 s{S_NONCE}, 0")
    a(f"s_cbranch_scc0 {pfx}_nok")
    nonce_get(a, X, 20, pfx+"_n0")
    a.label(f"{pfx}_nok")
    S=X;
    F32=128
    for d in range(40):
        a(f"v_lshlrev_b32 v{F32+2*d}, 16, v{SR+d}")
        a(f"v_and_b32 v{F32+2*d+1}, 0xffff0000, v{SR+d}")
    for j in range(4): a(f"v_add_f32 v{S+j}, v{F32+j}, v{F32+4+j}")
    for i in range(8,80,4):
        for j in range(4): a(f"v_add_f32 v{S+j}, v{S+j}, v{F32+i+j}")
    a(f"v_add_f32 v{S}, v{S}, v{S+1}"); a(f"v_add_f32 v{S+2}, v{S+2}, v{S+3}"); a(f"v_add_f32 v{S}, v{S}, v{S+2}")
    reduce8(a, S)
    M=S; V=S+4
    a(f"v_mul_f32 v{M}, 0x3acccccd, v{M}")
    for j in range(4): a(f"v_mov_b32 v{V+j}, 0") if j<2 else None
    for i in range(80):
        a(f"v_sub_f32 v{F32+i}, v{F32+i}, v{M}")
        a(f"v_fmac_f32 v{V+(i%2)}, v{F32+i}, v{F32+i}")
    a(f"v_add_f32 v{V}, v{V}, v{V+1}")
    reduce8(a, V)
    a(f"v_mul_f32 v{V}, 0x3acccccd, v{V}")
    bf16r(a, V, V)
    a(f"v_add_f32 v{V}, 0x3727c5ac, v{V}")
    bf16r(a, V, V)
    a(f"v_sqrt_f32 v{V}, v{V}")
    a(f"v_cvt_pk_bf16_f32 v{V+2}, v{M}, v{V}")
    a(f"v_mov_b32 v{V+3}, s{S_NONCE}")
    a("v_lshlrev_b32 v6, 3, v6")
    a("s_mov_b32 exec_lo, 0x01010101"); a("s_mov_b32 exec_hi, 0x01010101")
    a(f"buffer_store_dwordx2 v[{V+2}:{V+3}], v6, s[12:15], 0 offen sc1")
    a("s_mov_b64 exec, -1")
    ts(a,1)
    for i in range(10): a(f"v_lshlrev_b32 v{VO+i}, 3, v{VO+i}")
    a(f"s_mov_b32 s20, {SPIN_MAX}")
    a.label(f"{pfx}_sl")
    for i in range(10): a(f"buffer_load_dwordx2 v[{GR+2*i}:{GR+2*i+1}], v{VO+i}, s[12:15], 0 offen sc1")
    a("s_waitcnt vmcnt(0)")
    a(f"v_xor_b32 v2, s{S_NONCE}, v{GR+1}")
    for i in range(1,10):
        a(f"v_xor_b32 v4, s{S_NONCE}, v{GR+2*i+1}")
        a("v_or_b32 v2, v2, v4")
    a("v_cmp_ne_u32 vcc, 0, v2")
    a("s_sub_u32 s20, s20, 1")
    a("s_cmp_eq_u32 s20, 0")
    a(f"s_cbranch_scc1 {pfx}_sd")
    a("s_nop 1")
    a(f"s_cbranch_vccz {pfx}_sd")
    a("s_sleep 2")
    a(f"s_branch {pfx}_sl")
    a.label(f"{pfx}_sd")
    ts(a,2)
    a("v_lshlrev_b32 v2, 4, v1")
    a(f"v_add_u32 v2, {lds_base}, v2")
    for i in range(10):
        g=GR+2*i
        a(f"v_and_b32 v{g+1}, 0xffff0000, v{g}")
        a(f"v_rcp_f32 v{g+1}, v{g+1}")
        a(f"v_lshlrev_b32 v{g}, 16, v{g}")
        a(f"v_mul_f32 v{g}, v{g}, v{g+1}")
        for d in range(4):
            r=TR+4*i+d
            a(f"v_lshlrev_b32 v{X}, 16, v{r}")
            a(f"v_and_b32 v{X+1}, 0xffff0000, v{r}")
            a(f"v_fma_f32 v{X}, v{X}, v{g+1}, -v{g}")
            a(f"v_fma_f32 v{X+1}, v{X+1}, v{g+1}, -v{g}")
            a(f"v_cvt_pk_bf16_f32 v{r}, v{X}, v{X+1}")
        a(f"ds_write_b128 v2, v[{TR+4*i}:{TR+4*i+3}] offset:{1024*i}")
    a("v_lshrrev_b32 v2, 4, v1")
    a("v_lshlrev_b32 v3, 3, v2")
    a("v_bfe_u32 v4, v1, 2, 2")
    a("v_add_u32 v3, v3, v4")
    a("v_mul_u32_u24 v3, 160, v3")
    a("v_and_b32 v4, 3, v1")
    a("v_lshl_add_u32 v3, v4, 3, v3")
    a(f"v_add_u32 v3, {lds_base}, v3")
    a("v_and_b32 v4, 15, v1")
    a("s_mul_i32 s20, s65, 80")
    a("v_add_u32 v4, s20, v4")
    a("v_lshlrev_b32 v4, 12, v4")
    a("v_lshl_add_u32 v4, v2, 4, v4")
    a("s_lshl_b32 s21, s66, 7")
    a("v_add_u32 v4, s21, v4")
    a("s_waitcnt lgkmcnt(0)")
    O=SR
    idx=0
    for cg in range(5):
        for half in range(2):
            o=O+4*idx; off=half*32*160+cg*32
            a(f"ds_read_b64_tr_b16 v[{o}:{o+1}], v3 offset:{off}")
            a(f"ds_read_b64_tr_b16 v[{o+2}:{o+3}], v3 offset:{off+4*160}")
            idx+=1
            if idx%3==0 or idx==10: pass
        if cg in (1,3,4): a("s_waitcnt lgkmcnt(0)")
    idx=0
    for cg in range(5):
        for half in range(2):
            o=O+4*idx
            a(f"s_mov_b32 s20, {cg*16*4096+half*64}")
            a(f"buffer_store_dwordx4 v[{o}:{o+3}], v4, s[52:55], s20 offen sc1")
            idx+=1
    ts(a,3)
    a("s_waitcnt vmcnt(0)")
    ts(a,4)
    a("s_lshl_b32 s20, s65, 5")
    a("s_add_u32 s20, s20, s66")
    a("s_lshl_b32 s20, s20, 2")
    flag_set(a, X, 20, pfx)
```

```python
import sys
import common
from common import *
from conv import role_c2
from gfused import role_g
NAME="parallel_sum__ssm_conv_s4__glu_gated_swiglu__prompt_kernel"
HEADER = open('parallel_sum__ssm_conv_s4__glu_gated_swiglu__prompt.s.ref').read().split('; Override launch')[0]
def build(pf=True, pk=True, prio=2, nodot=False, skipc=False):
    out = HEADER
    out += "; @launch grid=(512,1,1) block=(256,1,1) lds=81920\n"
    out += '.amdgcn_target "amdgcn-amd-amdhsa--gfx950"\n'
    a=Asm()
    a("s_cmp_ge_u32 s2, 512"); a("s_cbranch_scc1 k_end")
    ts(a,0)
    a("s_cmp_ge_u32 s2, 256"); a("s_cbranch_scc1 k_c")
    role_g(a, 2, pf=pf, prio=prio, nodot=nodot)
    if common.PROF:
        a("s_waitcnt vmcnt(0)"); ts(a,7); ts_flush(a,0,2,8,"gts")
    a("s_branch k_end")
    a.label("k_c")
    a.unprotect()
    a("s_sub_u32 s3, s2, 256")
    role_c2(a, 3, pf=pf, pk=pk, lonly=getattr(common,'SKIPC',False))
    if common.PROF:
        a("s_waitcnt vmcnt(0)"); ts(a,7); ts_flush(a,0,2,8,"cts")
    a.label("k_end"); a("s_endpgm")
    out += kernel_text(NAME, a.text(), 256, nsgpr=100)
    return out
if __name__=="__main__":
    path = sys.argv[1]
    opts = sys.argv[2:]
    if 'prof' in opts: common.PROF=True
    if 'gl' in opts: common.GL=True
    if 'skipc' in opts: common.SKIPC=True
    open(path,"w").write(build(pf='nopf' not in opts, pk='nopk' not in opts, prio=0 if 'noprio' in opts else 2, nodot='nodot' in opts))
    print("wrote", path)
```
